```python
import torch

def _softmax(x, axis=-1):
    return torch.softmax(x, dim=axis)
def _gelu(x):
    return torch.nn.functional.gelu(x, approximate="tanh")
def _silu(x):
    return torch.nn.functional.silu(x)
def _sigmoid(x):
    return torch.sigmoid(x)
def _layernorm(x, axis=-1, eps=1e-5):
    m = x.mean(dim=axis, keepdim=True)
    v = x.var(dim=axis, keepdim=True, unbiased=False)
    return (x - m) / torch.sqrt(v + eps)
def _scatter_add(tgt, idx, src, axis=0):
    return tgt.clone().index_add_(axis, idx, src)
def _segment_sum(src, seg, n):
    out = torch.zeros((n,) + src.shape[1:], dtype=src.dtype)
    return out.index_add_(0, seg, src)
def _pad(x, pw):
    flat = tuple(v for pair in reversed(pw) for v in pair)
    return torch.nn.functional.pad(x, flat)

kernel_name = 'parallel_sum__gqa_block_cached__mixer_token_mlp__decode'

def setup_inputs():

    _w = (lambda a: (lambda t: t.to(torch.bfloat16) if t.is_floating_point() else t)(torch.as_tensor(a)))
    def _A_setup():
        B, Sq, D = 4, 1, 512
        Hq, Hkv, Sk, Dh = 32, 32, 8192, 128
        assert Hq % Hkv == 0, (Hq, Hkv)
        return {
            "x": _w((lambda *s: torch.randn(*s, dtype=torch.bfloat16) * 0.05)(B, Sq, D)),
            "k_cache": _w((lambda *s: torch.randn(*s, dtype=torch.bfloat16) * 3.2)(B, Hkv, Sk, Dh)),
            "v_cache": _w((lambda *s: torch.randn(*s, dtype=torch.bfloat16) * 0.8)(B, Hkv, Sk, Dh)),
            "wq": _w((lambda *s: torch.randn(*s, dtype=torch.bfloat16) * 3.2)(D, Hq * Dh) * (D ** -0.5)),
            "wo": _w((lambda *s: torch.randn(*s, dtype=torch.bfloat16) * 0.8)(Hq * Dh, D) * ((Hq * Dh) ** -0.5)),
        }
    _A_in = _A_setup()

    def _B_setup():
        B, S, D, F = 4, 1, 512, 1376
        return {
            "x": _w((lambda *s: torch.randn(*s, dtype=torch.bfloat16) * 0.05)(B, S, D)),
            "w1": _w((lambda *s: torch.randn(*s, dtype=torch.bfloat16) * 1.6)(S, F) * (S ** -0.5)),
            "b1": _w((lambda *s: torch.randn(*s, dtype=torch.bfloat16) * 1.6)(F) * 0.02),
            "w2": _w((lambda *s: torch.randn(*s, dtype=torch.bfloat16) * 1.6)(F, S) * (F ** -0.5)),
            "b2": _w((lambda *s: torch.randn(*s, dtype=torch.bfloat16) * 0.8)(S) * 0.02),
        }
    _B_in = _B_setup()

    return {
        "A_x": _A_in["x"],
        "A_k_cache": _A_in["k_cache"],
        "A_v_cache": _A_in["v_cache"],
        "A_wq": _A_in["wq"],
        "A_wo": _A_in["wo"],
        "B_x": _B_in["x"],
        "B_w1": _B_in["w1"],
        "B_b1": _B_in["b1"],
        "B_w2": _B_in["w2"],
        "B_b2": _B_in["b2"],
    }

def reference(A_x, A_k_cache, A_v_cache, A_wq, A_wo, B_x, B_w1, B_b1, B_w2, B_b2):
    def _A_ref(x, k_cache, v_cache, wq, wo):
        B, Sq, D = x.shape
        Hq, Dh = 32, 128
        Hkv = k_cache.shape[1]
        rep = Hq // Hkv
        q = (lambda x, *d: x.permute(*d))((x @ wq).reshape(B, Sq, Hq, Dh), 0, 2, 1, 3)
        k = (lambda x, n, axis: torch.repeat_interleave(x, n, dim=axis))(k_cache, rep, axis=1)
        v = (lambda x, n, axis: torch.repeat_interleave(x, n, dim=axis))(v_cache, rep, axis=1)
        scores = torch.einsum("bhqd,bhkd->bhqk", q, k) * (Dh ** -0.5)
        p = _softmax(scores, axis=-1)
        o = torch.einsum("bhqk,bhkd->bhqd", p, v)
        return (lambda x, *d: x.permute(*d))(o, 0, 2, 1, 3).reshape(B, Sq, Hq * Dh) @ wo

    def _B_ref(x, w1, b1, w2, b2):
        B, S, D = x.shape
        h = _layernorm(x, axis=-1)
        u = torch.einsum("bsd,sf->bdf", h, w1) + b1
        u = _gelu(u)
        y = torch.einsum("bdf,fs->bds", u, w2) + b2
        return (lambda x, *d: x.permute(*d))(y, 0, 2, 1)

    x = A_x
    xn = _layernorm(x, axis=-1)
    return x + _A_ref(xn, A_k_cache, A_v_cache, A_wq, A_wo) + _B_ref(xn, B_w1, B_b1, B_w2, B_b2)
```

```python
import re

def _regs(tok):
    t = tok.strip()
    t = re.sub(r"^(neg|abs|sext)\((.*)\)$", r"\2", t).lstrip("-").strip("|")
    m = re.fullmatch(r"([vsa])(\d+)", t)
    if m: return {(m.group(1), int(m.group(2)))}
    m = re.fullmatch(r"([vsa])\[(\d+):(\d+)\]", t)
    if m: return {(m.group(1), i) for i in range(int(m.group(2)), int(m.group(3)) + 1)}
    if t == "vcc": return {("s", 106), ("s", 107)}
    if t == "vcc_lo": return {("s", 106)}
    if t == "vcc_hi": return {("s", 107)}
    if t == "exec": return {("s", 126), ("s", 127)}
    if t == "m0": return {("s", 124)}
    return set()

def _split(rest):
    ops, depth, cur = [], 0, ""
    for ch in rest + ",":
        if ch in "[(": depth += 1
        elif ch in "])": depth -= 1
        if ch == "," and depth == 0:
            ops.append(cur.strip()); cur = ""
        else: cur += ch
    return [o for o in ops if o]

TRANS = ("v_exp_f32", "v_log_f32", "v_rcp_f32", "v_rsq_f32", "v_sqrt_f32", "v_sin_f32", "v_cos_f32")
class I:
    def __init__(self, text):
        self.text = text
        t = text.split(";")[0].strip()
        self.label = t[:-1] if t.endswith(":") else None
        self.directive = t.startswith(".") and not self.label
        self.mn = ""; self.w = set(); self.r = set(); self.ops = []
        if self.label or self.directive or not t: return
        p = t.split(None, 1)
        self.mn = mn = p[0]
        ops = _split(p[1]) if len(p) > 1 else []
        first = [o.split()[0] for o in ops]
        self.ops = first
        self.mods = " ".join(" ".join(o.split()[1:]) for o in ops)
        R = [_regs(o) for o in first]
        self.valu = mn.startswith("v_")
        self.mfma = mn.startswith("v_mfma")
        self.dot = mn.startswith("v_dot")
        self.trans = mn.split("_e32")[0].split("_e64")[0] in TRANS
        self.dpp = "_dpp" in mn
        self.perml = mn.startswith("v_permlane")
        self.rdlane = mn.startswith("v_readlane") or mn.startswith("v_readfirstlane")
        self.vmem = mn.startswith(("buffer_", "global_", "flat_"))
        self.ds = mn.startswith("ds_")
        self.salu = mn.startswith("s_")
        self.lds_dma = self.vmem and (" lds" in " " + self.mods or "load_lds" in mn)
        if self.valu:
            self.w = set(R[0]); self.r = set().union(*R[1:]) if len(R) > 1 else set()
            if self.perml: self.w |= R[1]; self.r |= R[0]
            if mn.startswith(("v_fmac", "v_dot2c")) or self.dpp or mn.startswith("v_writelane"): self.r |= R[0]
            if "_co_" in mn: self.w |= R[1]; self.r = set().union(*R[2:])
            if mn.startswith("v_cmpx"): self.w |= _regs("exec")
            if self.mfma:
                self.A, self.B, self.C, self.D = R[1], R[2], R[3], R[0]
                self.passes = 8 if "32x32x16" in mn else 4
        elif self.vmem:
            st = "store" in mn or "atomic" in mn
            if self.lds_dma: self.r = set().union(*R)
            elif "atomic" in mn and "sc0" in self.mods.split() and mn.startswith("global"):
                self.w = set(R[0]); self.r = set().union(*R[1:])
            elif st: self.r = set().union(*R)
            else: self.w = set(R[0]); self.r = set().union(*R[1:])
            self.wide_store = set()
            if "store" in mn and ("x4" in mn or "x3" in mn):
                self.wide_store = R[0] if mn.startswith("buffer") else R[1]
        elif self.ds:
            if mn.startswith(("ds_read", "ds_bpermute", "ds_permute", "ds_swizzle")):
                self.w = set(R[0]); self.r = set().union(*R[1:])
            else: self.r = set().union(*R)
        elif self.salu:
            if mn.startswith(("s_cmp", "s_waitcnt", "s_cbranch", "s_branch", "s_nop", "s_barrier", "s_sleep", "s_setprio", "s_endpgm", "s_bitcmp")):
                self.r = set().union(*R) if R else set()
            else:
                self.w = set(R[0]) if R else set(); self.r = set().union(*R[1:]) if len(R) > 1 else set()
                if "saveexec" in mn: self.w |= _regs("exec")
                if mn.startswith(("s_addk", "s_mulk", "s_bitset")): self.r |= set(R[0])
    def states(self):
        if self.label or self.directive or not self.mn: return 0
        if self.mn == "s_nop": return int(self.ops[0], 0) + 1
        return 1

def need(p, c):
    n = 0
    if not p.mn or not c.mn: return 0
    pv = {x for x in p.w if x[0] in "va"}; ps = {x for x in p.w if x[0] == "s"}
    if p.valu and not p.mfma:
        if c.valu and c.dpp and pv & c.r: n = max(n, 2)
        if c.valu and c.perml and pv & c.r: n = max(n, 2)
        if c.valu and c.rdlane and pv & c.r: n = max(n, 1)
        if c.valu and c.mfma and pv & c.r: n = max(n, 2)
        if p.trans and c.valu and pv & c.r: n = max(n, 1)
        if p.trans and (c.vmem or c.ds) and pv & c.r: n = max(n, 1)
        if p.dot and (c.valu or c.vmem or c.ds) and pv & (c.r | c.w):
            same_c = c.dot and c.mn == p.mn and not (pv & (_regs(c.ops[1]) | _regs(c.ops[2])))
            if not same_c: n = max(n, 3)
        if ps:
            if c.vmem and ps & c.r: n = max(n, 5)
            if c.valu and ps & c.r: n = max(n, 4 if (c.rdlane or c.mn.startswith("v_writelane")) else 2)
            if c.valu and c.mn.startswith("v_cndmask") and ("s", 106) in ps: n = max(n, 2)
            if c.salu and ps & c.r: n = max(n, 2)
            if c.mn.startswith("s_cbranch_vcc") and ("s", 106) in ps: n = max(n, 2)
            if ("s", 126) in ps and c.valu: n = max(n, 5)
    if p.mfma:
        big = {4: 8, 8: 12}[p.passes]
        if c.mfma:
            if p.D & (c.A | c.B): n = max(n, big)
            if p.D & c.C and not (p.D == c.C and p.passes == c.passes): n = max(n, big - 2)
            if p.D & c.D and not (p.D == c.C and p.passes == c.passes): n = max(n, big)
        elif (c.valu or c.vmem or c.ds) and p.D & (c.r | c.w): n = max(n, big)
        if c.valu and not c.mfma and p.C & c.w: n = max(n, {4: 3, 8: 7}[p.passes])
        if (c.vmem or c.ds) and (p.A | p.B) & c.w: n = max(n, 4)
    if p.vmem and getattr(p, "wide_store", None) and (c.valu or c.vmem or c.ds) and p.wide_store & c.w: n = max(n, 2)
    if p.salu and ("s", 124) in p.w and c.lds_dma: n = max(n, 1)
    return n

class Asm:
    def __init__(self): self.L = []
    def __call__(self, text):
        for line in text.split("\n"):
            line = line.strip()
            if line: self.L.append(I(line))
    def fix(self, verbose=False):
        changed = True; total = 0; start = 0
        while changed or start:
            if not changed: start = 0
            changed = False
            L = self.L
            labels = {x.label: i for i, x in enumerate(L) if x.label}
            jumps = {}
            for i, x in enumerate(L):
                if x.mn.startswith(("s_cbranch", "s_branch")): jumps.setdefault(labels[x.ops[0]], []).append(i)
            def preds(i):
                out = []
                if i > 0 and L[i - 1].mn not in ("s_branch", "s_endpgm"): out.append(i - 1)
                out += jumps.get(i, [])
                return out
            for ci, c in enumerate(L):
                if ci < start or not c.mn: continue
                worst = 0
                stack = [(p, 0) for p in preds(ci)]; seen = {}
                while stack:
                    pi, d = stack.pop()
                    if d >= 14 or seen.get(pi, 99) <= d: continue
                    seen[pi] = d
                    p = L[pi]
                    worst = max(worst, need(p, c) - d)
                    for q in preds(pi): stack.append((q, d + p.states()))
                if worst > 0:
                    if verbose: print("nop", worst, "before", c.text)
                    L.insert(ci, I(f"s_nop {worst-1}")); changed = True; total += 1; start = ci + 1
                    break
        return total
    def text(self):
        return "\n".join((x.text if (x.label or x.directive) else "    " + x.text) for x in self.L) + "\n"
```

```python
import sys, struct, math, os
from asmlib import Asm
KN = "parallel_sum__gqa_block_cached__mixer_token_mlp__decode_kernel"
REF = "parallel_sum__gqa_block_cached__mixer_token_mlp__decode.s.ref"
HDR = open(REF).read().split("; Override launch")[0] if os.path.exists(REF) else ""
def f2h(x): return "0x%08x" % struct.unpack("<I", struct.pack("<f", x))[0]
LOG2E = math.log2(math.e)
SCALE = 128 ** -0.5
SC, QP, OB, FL, FW, BO, MX, MP, WO = 0, 16384, 18432, 19712, 19728, 19744, 19776, 20032, 20736
LDS_BYTES = WO + 4 * 32768
ML_OFF = 0x80000
RK_OFF = 0x100000
RK_STR = 4224
FULL = "row_mask:0xf bank_mask:0xf"
SPIN_MAX = 1 << 18
X_, K_, V_, WQ_, WO_, W1_, B1_, W2_, B2_, OUT_, DBG_, WS_ = 32, 34, 36, 38, 40, 44, 46, 48, 50, 52, 54, 56
def sp(r): return f"s[{r}:{r+1}]"

DOC = """;
;       flight (the point where HBM saturates); the first 64 tiles are fetched while q is still being computed.
; Hand-offs in d_ws never rely on what d_ws held at entry: every word is first set to 0xffffffff ("empty") by
;   this launch, and nobody writes or reads one before all 64 workgroups of the batch have counted in on a
;   counter that the batch's first workgroup zeroed (announced through d_debug).  All waits are bounded.
; Load balance: at ten progress marks every workgroup draws a ticket on a per-batch counter; the late ones
;   keep seven loads per wave in flight for a while so that all workgroups finish together.
;
"""
def gen(W=5, W0=5, WP=None, pol="nt", wpol="", qpol="", xpol="", stamps=0, cstep=4, wowin=2, prio=2, P=48, CU=80,
        wqwin=3, diag=None, diagwg=None, zslp=0, fslp=32, nox=0, clr="late", mlit=10, stag=0, WH=7, hmask=0, hsub=1, tau=0, c0=0, cst=2, lay="4.20.80.8.10.40.100", wqrot=0, worot=0,
        rk=0x0841041041044400, nsh=2, ths="32.44.52.58.62", cslp=6, rot=1, vat="", rkstr=4224, zm=3, zsep=0, zst="sc1", zld="sc1", opol="", cont=0, wqsw=28, WT=0, tls="", mix3=1, zp=1, zoff=6, root=1, diagb=None, order=1, touch=0, cpf=0, dry=0, bochk=1, cpf2=0, endhi=1, PL=16, fast=1, hold=1, xv=0, early=1, ths0=None, rootst=1, G=8, thl=None, nl=1, lean=3, sdef=25, comp=1, xlate=6, xpf=1, rlow=0, px=None, hp=None, jit=0, spec=1, tprio=3, ic=0, ish=5, imax=96, sm=0, wq0=0, wo0=0, wpre=2, zl=0, otouch=0, hl=0, nb=0, o1=1, o2=1, o3=1, help=3, hs=None, hpol=None, doff=0, wont=0, wqnt=0, qpre=1, tap=4, xw=0, mpf=0, sfl=0, tb=0, altk=None, dpre=0, pw=8, h0=None):
    a = Asm()
    RK_STR = rkstr
    NL = max(1, -(-(bin(rk).count('1') << (nsh - 2)) // 64))
    RING = 32
    WP = WP or W
    D = WH or W
    lab = [0]; cnt = [0]
    def lissue(j):
        if WH:
            lab[0] += 1
            a(f"s_waitcnt vmcnt({WH-1})"); a(f"s_cbranch_vccnz L_w{lab[0]}"); a(f"s_waitcnt vmcnt({W-1})")
            if WT: a("s_cmp_eq_u32 s58, 0"); a(f"s_cbranch_scc1 L_w{lab[0]}"); a(f"s_waitcnt vmcnt({WT-1})")
            a(f"L_w{lab[0]}:")
            issue(j)
        else: issue(j, W - 1)
    def rdmode():
        if WT: a(f"ds_read_b64 v[96:97], v105 offset:{BO}")
        else: a(f"ds_read_b32 v96, v105 offset:{BO}")
    def cmpmode():
        a("v_cmp_ge_u32 vcc, v96, v12")
        if WT: a("v_cmp_ge_u32 s[58:59], v97, v12")
    def setmode(j):
        if not WH: return
        if tau:
            if j % (16 // hsub) == 0: a("s_memrealtime s[92:93]"); a(f"s_add_u32 s58, s58, {tau // hsub}")
            if j % (16 // hsub) == 1:
                a("s_waitcnt lgkmcnt(0)"); a("s_lshl_b32 s92, s92, 4"); a("s_sub_u32 s92, s92, s58"); a("s_cmp_gt_i32 s92, 0"); a("s_cselect_b64 vcc, -1, 0")
        elif rk: pass
        elif j % (16 // hsub) == 0:
            a("s_bitcmp1_b32 s58, 0"); a("s_cselect_b64 vcc, -1, 0"); a("s_lshr_b64 s[58:59], s[58:59], 1")
    STEP, REG = 8192, 1 << 21
    def slot(j): return f"v[{RING+4*j}:{RING+4*j+3}]"
    def sl(j, k): return f"v{RING+4*j+k}"
    def stamp(k, mode=1):
        if diag is not None and k not in (diag, diagb): return
        if stamps and (stamps == mode or k < 2):
            a(f"s_memrealtime s[{64+2*k}:{65+2*k}]"); a("s_waitcnt lgkmcnt(0)")
    def dump_stamps(ks):
        a("s_lshl_b32 s60, s2, 7"); a("s_add_u32 s60, s60, 0x20000000")
        a(f"s_add_u32 s62, s{WS_}, s60"); a(f"s_addc_u32 s63, s{WS_+1}, 0")
        a("s_mov_b64 exec, 1"); a("v_mov_b32 v230, 0")
        for k in ks:
            a(f"v_mov_b32 v232, s{64+2*k}"); a(f"v_mov_b32 v233, s{65+2*k}")
            a(f"global_store_dwordx2 v230, v[232:233], s[62:63] offset:{8*k}")
            a("s_nop 1")
        if 0 in ks:
            a("s_getreg_b32 s60, hwreg(HW_REG_XCC_ID)"); a("v_mov_b32 v232, s60"); a("v_mov_b32 v233, 0")
            a(f"global_store_dwordx2 v230, v[232:233], s[62:63] offset:112")
            a("s_getreg_b32 s60, hwreg(HW_REG_HW_ID)"); a("v_mov_b32 v234, s60"); a("v_mov_b32 v235, 0")
            a(f"global_store_dwordx2 v230, v[234:235], s[62:63] offset:120")
    def diag_exit():
        if diagwg is not None:
            a(f"s_cmp_lg_u32 s2, {diagwg}"); a("s_cbranch_scc1 L_end")
        if diagb is None: a(f"s_add_u32 s60, s{64+2*diag}, 12000")
        else:
            a(f"s_sub_u32 s60, s{64+2*diag}, s{64+2*diagb}"); a(f"s_sub_u32 s60, s60, {doff}"); a("s_max_i32 s60, s60, 0"); a("s_min_u32 s60, s60, 2000"); a("s_mul_i32 s60, s60, 10"); a("s_add_u32 s60, s60, s64"); a("s_add_u32 s60, s60, 12000")
        a("L_diag:"); a("s_sleep 1"); a("s_memrealtime s[62:63]"); a("s_waitcnt lgkmcnt(0)")
        a("s_sub_u32 s61, s62, s60"); a("s_cmp_lt_i32 s61, 0"); a("s_cbranch_scc1 L_diag")
    def jitter(point, mask, val, wave=None, n=30):
        if jit != point: return
        a(f"s_and_b32 s90, s2, {mask}"); a(f"s_cmp_lg_u32 s90, {val}"); a("s_cbranch_scc1 L_jit_out")
        if wave is not None: a(f"s_cmp_lg_u32 s20, {wave}"); a("s_cbranch_scc1 L_jit_out")
        a(f"s_mov_b32 s90, {n}"); a("L_jit:"); a("s_sleep 127"); a("s_sub_u32 s90, s90, 1"); a("s_cbranch_scc0 L_jit"); a("L_jit_out:")
    def rowred(v, op="v_add_f32"):
        a(f"{op}_dpp {v}, {v}, {v} quad_perm:[1,0,3,2] {FULL}")
        a(f"{op}_dpp {v}, {v}, {v} quad_perm:[2,3,0,1] {FULL}")
        a(f"{op}_dpp {v}, {v}, {v} row_half_mirror {FULL}")
        a(f"{op}_dpp {v}, {v}, {v} row_mirror {FULL}")
    def wavered(v, s, op="v_add_f32"):
        rowred(v, op)
        a(f"{op}_dpp {v}, {v}, {v} row_bcast:15 row_mask:0xa bank_mask:0xf")
        a(f"{op}_dpp {v}, {v}, {v} row_bcast:31 row_mask:0xc bank_mask:0xf")
        a(f"v_readlane_b32 {s}, {v}, 63")
    def rnd(d, s): a(f"v_cvt_pk_bf16_f32 {d}, 0, {s}")
    def masks(t0, t1):
        a("; v18..v21: lane keeps halfword (lane&7) of an 8-halfword MFMA operand row")
        a(f"v_and_b32 {t0}, 1, v1"); a(f"v_lshlrev_b32 {t0}, 4, {t0}"); a(f"v_mov_b32 {t1}, 0xffff")
        a(f"v_lshlrev_b32 {t1}, {t0}, {t1}"); a(f"v_bfe_u32 {t0}, v1, 1, 2")
        for k in range(4):
            a(f"v_cmp_eq_u32 vcc, {k}, {t0}"); a(f"v_cndmask_b32 v{18+k}, 0, {t1}, vcc")
    def sel(src, i):
        for k in range(4):
            a(f"v_and_b32_dpp v{24+k}, {src}, v{18+k} row_newbcast:{i} {FULL}")
    LM = [int(x, 16) << 8 for x in str(lay).split(".")]
    w0m, w1m, hm, IM = LM[0], LM[1], LM[2], LM[3:]
    OV = (w0m | w1m | hm) & (IM[0] | IM[1] | IM[2] | IM[3])
    def imask(n):
        x = 0
        for b in range(4):
            if n >> b & 1: x ^= IM[b]
        return x
    keys = sorted({imask(n) & OV for n in range(16)})
    VOFF = dict(zip(keys, ["v2", "v0", "v254", "v255"]))
    assert len(keys) <= 2 or P <= 48
    def soff(n): return (imask(n) & ~OV) + ((n >> 4) << 17)
    altp = [None]
    cur = [0]
    def issue(j, wait=None):
        if wait is not None: a(f"s_waitcnt vmcnt({wait})")
        n = cnt[0]; cnt[0] += 1
        imm = soff(n) - cur[0]
        assert 0 <= imm < 4096
        o = f" offset:{imm}" if imm else ""
        if j is None:
            assert not imm
            a(f"buffer_load_dwordx4 {VOFF[imask(n) & OV]}, s[8:11], s25 offen {pol} lds"); a("s_addk_i32 m0, 1024" if comp else "s_add_u32 m0, m0, 1024")
        elif altp[0] is not None:
            lab[0] += 1
            a("s_cmp_eq_u32 s26, 15"); a(f"s_cbranch_scc1 L_alt{lab[0]}")
            a(f"buffer_load_dwordx4 {slot(j)}, {VOFF[imask(n) & OV]}, s[8:11], s25 offen{o} {pol}"); a(f"s_branch L_aj{lab[0]}")
            a(f"L_alt{lab[0]}:"); a(f"buffer_load_dwordx4 {slot(j)}, {VOFF[imask(n) & OV]}, s[8:11], s25 offen{o} {altp[0]}"); a(f"L_aj{lab[0]}:")
            altp[0] = None
        else: a(f"buffer_load_dwordx4 {slot(j)}, {VOFF[imask(n) & OV]}, s[8:11], s25 offen{o} {pol}")
        if px:
            cur[0] = soff(n + 1)
            if n & 15 == 15:
                a(f"s_add_u32 s28, s28, 0x20000"); a(f"s_and_b32 s28, s28, {REG-1}"); a("s_xor_b32 s25, s28, s29")
            else: a(f"s_xor_b32 s25, s25, {soff(n + 1) ^ soff(n)}")
            return
        nxt = soff(n + 1)
        if comp and not (PR <= n + 1 < P): nxt &= ~0xfff
        d = nxt - cur[0]; cur[0] = nxt
        if comp and d and -32768 <= d < 32768: a(f"s_addk_i32 s25, {d}")
        elif d > 0: a(f"s_add_u32 s25, s25, {d}")
        elif d < 0: a(f"s_sub_u32 s25, s25, {-d}")
        if n & 15 == 15: a(f"s_and_b32 s25, s25, {REG-1}")
    PR = P; P = P + PL
    def slot_of(n):
        if n >= P: return n % 16
        if n >= PR: return 16 + (n - PR) % 16
        return (n + P) % 16 if n < 16 else n

    a(f"{KN}:")
    if stamps or dpre: a("s_memrealtime s[64:65]")
    if stamps and diag is None: a("s_mov_b64 s[76:77], 0")
    if lean == 2:
        assert (w0m, w1m, hm) == (0x400, 0x2000, 0x8000) and len(keys) == 1 and W0 == 5 and IM[:3] == [0x800, 0x1000, 0x4000]
        a("s_load_dwordx16 s[32:47], s[0:1], 0")
        a("s_cmpk_ge_u32 s2, 256"); a("s_cbranch_scc1 L_end")
        a("v_readfirstlane_b32 s20, v0")
        a("s_lshl_b32 s14, s2, 25"); a("s_lshr_b32 s23, s2, 7")
        a("s_bitcmp1_b32 s20, 8"); a("s_cbranch_scc1 L_helper")
        a("; ---- stream waves 0..3: the first five K loads sit in the first 128 bytes of code")
        a("s_lshr_b32 s14, s14, 8"); a("s_lshr_b32 s15, s20, 7"); a("s_mulk_i32 s15, 384"); a("s_lshl_b32 s16, s23, 11")
        a("s_add_u32 s15, s15, s16"); a("s_add_u32 s16, s15, s14"); a("s_addk_i32 s16, 256")
        a("v_add_lshl_u32 v3, v0, s16, 4"); a("v_add_u32 v4, 0x3000, v3")
        a("s_waitcnt lgkmcnt(0)")
        for t in range(4): a(f"global_load_dwordx4 {slot(slot_of(t))}, v3, {sp(K_)} offset:{2048*t - 4096} {pol}")
        a(f"global_load_dwordx4 {slot(slot_of(4))}, v4, {sp(K_)} {pol}")
        cnt[0] = 5; cur[0] = soff(5) & ~0xfff if comp else soff(5)
        a("s_lshl_b32 s14, s14, 4"); a("v_add_lshl_u32 v2, v0, s15, 4")
        a("s_mov_b32 s11, 0x20000"); a("s_lshl_b32 s10, s11, 4"); a(f"s_movk_i32 s25, {cur[0]}")
        a(f"s_add_u32 s8, s{K_}, s14"); a(f"s_addc_u32 s9, s{K_+1}, 0")
    elif lean == 3:
        assert (w0m, w1m, hm) == (0x400, 0x2000, 0x8000) and len(keys) == 1 and wpre and qpre
        a("s_load_dwordx16 s[32:47], s[0:1], 0")
        a("s_cmpk_ge_u32 s2, 256"); a("s_cbranch_scc1 L_end")
        a("v_readfirstlane_b32 s20, v0")
        a("s_and_b32 s22, s2, 31                         ; head")
        a("s_lshr_b32 s15, s2, 5")
        if jit in (1, 2, 11): jitter(1, 63, 0); jitter(2, 63, 37); jitter(11, 255, 0, None, 60)
        if jit in (3, 4): jitter(3, 15, 5, 128); jitter(4, 31, 9, 384)
        a("s_bitcmp1_b32 s20, 8"); a("s_cbranch_scc1 L_helper")
        a("; ---- stream waves 0..3.  The eight workgroups of a head first pull one eighth each of wo[head rows, :] and")
        a("s_lshl3_add_u32 s16, s22, s15"); a("s_lshl_b32 s16, s16, 10"); a("s_addk_i32 s16, 256")
        a("v_add_lshl_u32 v3, v0, s16, 4"); a("v_add_u32 v4, 0x2000, v3")
        a("s_lshl_b32 s16, s15, 8"); a("s_add_u32 s16, s16, s20"); a("s_lshl3_add_u32 s16, s16, s22"); a("s_lshl_b32 s16, s16, 4")
        a("v_and_b32 v6, 15, v0")
        a("s_waitcnt lgkmcnt(0)")
        for k in range(4): a(f"global_load_dwordx4 {slot(44+k)}, {'v3' if k < 2 else 'v4'}, {sp(WO_)} offset:{4096*(k&1) - 4096} {wpol}")
        a("v_bfe_u32 v5, v0, 4, 2"); a("v_lshl_add_u32 v5, v5, 9, v6"); a("v_add_lshl_u32 v5, v5, s16, 4")
        for k in range(4):
            if 4 + k >= pw: a(f"s_waitcnt vmcnt({pw-1})")
            a(f"global_load_dwordx4 {slot(40+k)}, v5, {sp(WQ_)} {qpol}")
            if k < 3: a("v_add_u32 v5, 0x8000, v5")
        a("s_lshr_b32 s21, s2, 6                         ; batch")
        a("s_lshl_b32 s27, s21, 5"); a("s_or_b32 s27, s27, s22")
        a("s_and_b32 s23, s2, 32"); a("s_lshl_b32 s14, s27, 21")
        a("s_lshr_b32 s15, s20, 7"); a("s_mulk_i32 s15, 6"); a("s_add_u32 s15, s15, s23"); a("s_lshl_b32 s15, s15, 10")
        a("v_lshl_add_u32 v2, v0, 4, s15")
        if altk is not None:
            a(f"s_cmp_ge_u32 s27, {altk}"); a(f"s_cselect_b32 s{K_}, s42, s{K_}"); a(f"s_cselect_b32 s{K_+1}, s43, s{K_+1}")
        a("s_mov_b32 s11, 0x20000"); a("s_mov_b32 s25, 0"); a("s_lshl_b32 s10, s11, 4")
        a(f"s_add_u32 s8, s{K_}, s14"); a(f"s_addc_u32 s9, s{K_+1}, 0")
    elif lean:
        assert (w0m, w1m, hm) == (0x400, 0x2000, 0x8000) and len(keys) == 1
        a("s_load_dwordx16 s[32:47], s[0:1], 0")
        a("s_cmpk_ge_u32 s2, 256"); a("s_cbranch_scc1 L_end")
        a("v_readfirstlane_b32 s20, v0")
        a("s_lshr_b32 s21, s2, 6                         ; batch")
        a("s_and_b32 s22, s2, 31                         ; head")
        a("s_lshl_b32 s27, s21, 5"); a("s_or_b32 s27, s27, s22")
        a("s_and_b32 s23, s2, 32")
        a("s_mov_b32 s11, 0x20000")
        if jit in (1, 2, 11): jitter(1, 63, 0); jitter(2, 63, 37); jitter(11, 255, 0, None, 60)
        if jit in (3, 4): jitter(3, 15, 5, 128); jitter(4, 31, 9, 384)
        a("s_bitcmp1_b32 s20, 8"); a("s_cbranch_scc1 L_helper")
        a("; ---- stream waves 0..3: first K loads")
        a("s_lshl_b32 s14, s27, 21")
        a("s_lshr_b32 s15, s20, 7"); a("s_mulk_i32 s15, 6"); a("s_add_u32 s15, s15, s23"); a("s_lshl_b32 s15, s15, 10")
        a("v_lshl_add_u32 v2, v0, 4, s15")
        a("s_mov_b32 s25, 0"); a("s_lshl_b32 s10, s11, 4")
        if wpre:
            a("s_lshr_b32 s16, s2, 5"); a("s_lshl3_add_u32 s16, s22, s16"); a("s_lshl_b32 s16, s16, 10"); a("s_addk_i32 s16, 256")
            a("v_add_lshl_u32 v3, v0, s16, 4"); a("v_add_u32 v4, 0x2000, v3")
        if qpre:
            a("s_lshr_b32 s16, s2, 5"); a("s_lshl_b32 s16, s16, 19"); a("s_lshl_b32 s17, s22, 8"); a("s_add_u32 s16, s16, s17")
            a("s_lshl_b32 s17, s20, 11"); a("s_add_u32 s16, s16, s17")
            a("v_bfe_u32 v5, v0, 4, 2"); a("v_and_b32 v6, 15, v0"); a("v_lshlrev_b32 v6, 4, v6"); a("v_lshl_add_u32 v5, v5, 13, v6"); a("v_add_u32 v5, s16, v5")
            for k in range(1, 4): a(f"v_add_u32 v{5+k}, {0x8000*k}, v5")
        a("s_waitcnt lgkmcnt(0)")
        if qpre:
            a("; this workgroup's eighth of wq[:, head columns] goes into L2 ahead of the K stream")
            for k in range(4): a(f"global_load_dwordx4 {slot(40+k)}, v{5+k}, {sp(WQ_)} {qpol}")
        if wpre:
            a("; this workgroup's eighth of wo[head rows] goes into L2 together with the first reads of wq")
            for k in range(4): a(f"global_load_dwordx4 {slot(44+k)}, {'v3' if k < 2 else 'v4'}, {sp(WO_)} offset:{4096*(k&1) - 4096} {wpol}")
        a(f"s_add_u32 s8, s{K_}, s14"); a(f"s_addc_u32 s9, s{K_+1}, 0")
    else:
        a("s_cmp_ge_u32 s2, 256"); a("s_cbranch_scc1 L_end")
        a("s_load_dwordx16 s[32:47], s[0:1], 0"); a("s_load_dwordx8 s[48:55], s[0:1], 64"); a("s_load_dwordx2 s[56:57], s[0:1], 96")
        a("v_lshrrev_b32 v2, 6, v0"); a("v_and_b32 v1, 63, v0")
        a("v_readfirstlane_b32 s20, v2")
        a("s_lshr_b32 s21, s2, 6                         ; batch")
        if hp:
            a("s_mov_b32 s22, 0")
            for k, ch in enumerate(str(hp)[1:]):
                a(f"s_bitcmp1_b32 s2, {k}"); a(f"s_cselect_b32 s16, {1 << int(ch)}, 0"); a("s_or_b32 s22, s22, s16")
        else: a("s_and_b32 s22, s2, 31                         ; head")
        a("s_bfe_u32 s23, s2, 0x10005")
        a("s_lshl_b32 s27, s21, 5"); a("s_add_u32 s27, s27, s22")
        a("s_mov_b32 s11, 0x20000")
        jitter(1, 63, 0); jitter(2, 63, 37); jitter(3, 15, 5, 2); jitter(4, 31, 9, 6); jitter(11, 255, 0, None, 60)
        a("s_cmp_ge_u32 s20, 4"); a("s_cbranch_scc1 L_helper")
        a("; ---- stream waves 0..3: first K loads")
        a("s_lshl_b32 s14, s27, 21")
        if (w0m, w1m) == (0x400, 0x800) and not hm & 0xfff:
            a(f"s_mul_i32 s15, s23, {hm}"); a("v_lshl_add_u32 v2, v0, 4, s15")
        else:
            a(f"s_mul_i32 s15, s23, {hm}")
            a("s_and_b32 s16, s20, 1"); a(f"s_mul_i32 s16, s16, {w0m}"); a("s_xor_b32 s15, s15, s16")
            a("s_lshr_b32 s16, s20, 1"); a(f"s_mul_i32 s16, s16, {w1m}"); a("s_xor_b32 s15, s15, s16")
            a("v_lshl_add_u32 v2, v1, 4, s15")
        for kx in keys[1:]: a(f"v_xor_b32 {VOFF[kx]}, {kx}, v2")
        a("s_mov_b32 s25, 0")
        if px:
            for bit, mk in enumerate(str(px).split(".")):
                mk = int(mk, 16) << 8
                assert not mk & (w0m | w1m | hm | 0x3ff)
                if mk: a(f"s_bitcmp1_b32 s27, {bit}"); a(f"s_cselect_b32 s16, {mk}, 0"); a("s_xor_b32 s25, s25, s16")
            a("s_mov_b32 s29, s25"); a("s_mov_b32 s28, 0")
        a(f"s_mov_b32 s10, {REG}")
        a("s_waitcnt lgkmcnt(0)")
        a(f"s_add_u32 s8, s{K_}, s14"); a(f"s_addc_u32 s9, s{K_+1}, 0")
    stamp(2, 2)
    if lean == 3: W0 = 0
    if lean != 2:
        for t in range(W0): issue(slot_of(t), max(W0 - 1, tap - t) if qpre else W0 - 1 if (wpre and t >= wpre - 1) else None)
    mark0 = len(a.L)
    if not order: a("s_branch L_stream")

    EPS = f2h(1e-5)
    X = [f"v{168+k}" for k in range(8)]
    def lnstats(mb, rinv):
        a(f"v_add_f32 v176, {X[0]}, {X[1]}"); a(f"v_add_f32 v177, {X[2]}, {X[3]}")
        a(f"v_add_f32 v178, {X[4]}, {X[5]}"); a(f"v_add_f32 v179, {X[6]}, {X[7]}")
        a("v_add_f32 v176, v176, v177"); a("v_add_f32 v178, v178, v179"); a("v_add_f32 v176, v176, v178")
        wavered("v176", "s17")
        a(f"v_mov_b32 v177, {f2h(1/512)}"); a(f"v_mul_f32 {mb}, s17, v177")
        a(f"v_sub_f32 v178, {X[0]}, {mb}"); a("v_mul_f32 v176, v178, v178")
        for k in range(1, 8):
            a(f"v_sub_f32 v178, {X[k]}, {mb}"); a("v_fmac_f32 v176, v178, v178")
        wavered("v176", "s17")
        a("v_mul_f32 v176, s17, v177"); rnd("v176", "v176"); a(f"v_add_f32 v176, {EPS}, v176"); rnd("v176", "v176")
        a("v_sqrt_f32 v176, v176"); rnd(mb, mb); rnd("v176", "v176"); a(f"v_rcp_f32 {rinv}, v176")
    def norm(d, s, mb, rinv, dup=False):
        a(f"v_sub_f32 {d}, {s}, {mb}"); rnd(d, d); a(f"v_mul_f32 {d}, {d}, {rinv}")
        if dup: a(f"v_cvt_pk_bf16_f32 {d}, {d}, {d}")
        else: rnd(d, d)
    def clear():
        a("; mark this workgroup's hand-off words (z inbox, softmax word) as empty")
        for k in range(4): a(f"v_mov_b32 v{220+k}, -1")
        a(f"s_lshl_b32 s17, s2, {10 if zm == 3 else 11}"); a("v_add_u32 v224, s17, v3")
        a(f"s_lshl_b32 s17, s2, 7"); a(f"s_add_u32 s17, s17, {ML_OFF}"); a("v_mov_b32 v225, s17")
        if not nox & 256: a(f"global_store_dwordx4 v224, v[220:223], {sp(WS_)} sc1")
        if not nox & (256 | 512) and zm != 3: a(f"global_store_dwordx4 v224, v[220:223], {sp(WS_)} offset:1024 sc1")
        a("s_mov_b64 exec, 1")
        a(f"global_store_dwordx2 v225, v[220:221], {sp(WS_)} sc1")
        if rk and root:
            if not rootst:
                a("s_cmp_lg_u32 s24, 0"); a("s_cbranch_scc1 L_noroot"); rootinit(); a("L_noroot:")
        elif rk:
            a(f"s_mov_b64 exec, {(1 << NL) - 1}")
            a(f"s_mul_i32 s17, s2, {RK_STR * NL}"); a(f"s_add_u32 s17, s17, {RK_OFF}"); a(f"v_mul_u32_u24 v226, {RK_STR}, v1"); a("v_add_u32 v226, s17, v226")
            a(f"global_store_dword v226, v9, {sp(WS_)} sc1")
        a("s_mov_b64 exec, -1")
    def nextmark():
        a("s_ff1_i32_b64 s12, s[4:5]"); a("s_bitset0_b64 s[4:5], s12"); a(f"s_add_u32 s7, s7, {RK_STR}")
        if G == 4: a("s_add_u32 s12, s12, s12")
    def ticket(th, last=False):
        a("s_mov_b32 s18, 1")
        a(f"s_atomic_add s18, {sp(WS_)}, s7 glc")
        a("s_add_u32 s12, s12, 1")
        a("s_waitcnt lgkmcnt(0)")
        if sm:
            a(f"s_mul_i32 s17, s29, {sm}"); a(f"s_mul_i32 s18, s18, {8 - sm}"); a("s_add_u32 s18, s18, s17"); a("s_lshr_b32 s18, s18, 3"); a("s_mov_b32 s29, s18")
        if ic:
            a("s_add_u32 s29, s29, s18"); a(f"s_sub_u32 s29, s29, {ic}"); a("s_max_i32 s29, s29, 0"); a(f"s_min_i32 s29, s29, {imax}")
            a(f"s_lshr_b32 s17, s29, {ish}"); a("s_add_u32 s12, s12, s17")
        def grade(tt):
            for T in str(tt).split("."):
                a(f"s_cmp_ge_u32 s18, {T}"); a("s_addc_u32 s12, s12, 0")
        if thl and last:
            a("s_bcnt1_i32_b64 s17, s[4:5]"); a(f"s_cmp_lt_u32 s17, {nl}"); a("s_cbranch_scc1 L_lastm")
            grade(th); a("s_branch L_graded"); a("L_lastm:"); grade(thl); a("L_graded:")
        else: grade(th)
        a("v_mov_b32 v188, s12"); a(f"ds_write_b32 v9, v188 offset:{BO}")
        nextmark()
    def flagwait(fail):
        a(f"s_mov_b32 s6, {SPIN_MAX}")
        if sfl & 1:
            a(f"s_lshl_b32 s17, s21, {cst}"); a("s_waitcnt vmcnt(0)")
            a("L_c2poll:")
            a(f"s_load_dword s18, {sp(DBG_)}, s17 glc")
            a("s_sub_u32 s6, s6, 1"); a("s_waitcnt lgkmcnt(0)"); a(f"s_cbranch_scc1 {fail}")
            a("s_cmp_eq_u32 s18, 0"); a("s_cbranch_scc1 L_c2poll")
            return
        a("L_c2poll:")
        a(f"global_load_dword v220, v10, {sp(DBG_)} sc1")
        a("s_sub_u32 s6, s6, 1"); a(f"s_cbranch_scc1 {fail}")
        a("s_waitcnt vmcnt(0)")
        a(f"v_cmp_gt_u32 vcc, 1, v220"); a("s_cbranch_vccnz L_c2poll")
    def rootinit():
        nm = bin(rk).count("1")
        a("; first workgroup of the batch: zero the ticket counters, then say so in d_debug")
        a(f"s_mov_b64 exec, {(1 << nm) - 1}")
        a(f"s_mul_i32 s17, s2, {RK_STR}"); a(f"s_add_u32 s17, s17, {RK_OFF}"); a(f"v_mul_u32_u24 v226, {RK_STR}, v1"); a("v_add_u32 v226, s17, v226")
        a(f"global_store_dword v226, v9, {sp(WS_)} sc1")
        a("s_mov_b64 exec, 1"); a("s_waitcnt vmcnt(0)")
        a(f"global_store_dword v10, v11, {sp(DBG_)} sc1")
    def late(ld=True):
        if not lean: return
        if ld: a("s_load_dwordx8 s[48:55], s[0:1], 64"); a("s_load_dwordx2 s[56:57], s[0:1], 96")
        a("s_lshr_b32 s20, s20, 6"); a("v_and_b32 v1, 63, v0")
        if lean in (1, 3): a("s_bfe_u32 s23, s2, 0x10005")
        else:
            a("s_and_b32 s22, s2, 31                         ; head"); a("s_bfe_u32 s21, s2, 0x20005                    ; batch")
            a("s_lshl1_add_u32 s2, s21, s23"); a("s_lshl_b32 s2, s2, 5"); a("s_or_b32 s2, s2, s22")
    a("L_helper:")
    late(not hl)
    if lean >= 2: a("s_mov_b32 s11, 0x20000")
    if lean == 3: a("s_lshr_b32 s21, s2, 6                         ; batch")
    a("s_sub_u32 s16, s20, 4")
    if nb:
        a("; LDS words used for signalling start at zero")
        a("v_mov_b32 v9, 0"); a(f"v_lshlrev_b32 v8, 2, v1"); a("s_mov_b64 exec, 0xfff")
        a(f"ds_write_b32 v8, v9 offset:{FL}"); a("s_mov_b64 exec, -1")
    a("s_and_b32 s24, s2, 63")
    a("v_lshlrev_b32 v3, 4, v1"); a("v_lshrrev_b32 v6, 4, v1"); a("v_and_b32 v7, 15, v1")
    a("s_lshl_b32 s17, s16, 20"); a("s_lshl_b32 s18, s22, 8"); a("s_add_u32 s17, s17, s18")
    a("v_lshlrev_b32 v2, 17, v6"); a("v_lshl_add_u32 v2, v7, 4, v2"); a("v_add_u32 v2, s17, v2")
    a("s_lshl_b32 s17, s16, 8"); a("v_lshl_add_u32 v4, v1, 1, s17")
    a("s_lshr_b32 s15, s2, 5")
    if wqrot:
        a(f"s_mul_i32 s28, s15, {wqrot}")
        if rlow & 1: a("s_add_u32 s17, s15, s16"); a("s_and_b32 s17, s17, 3"); a("s_or_b32 s28, s28, s17")
        a("s_and_b32 s17, s28, 15"); a("s_and_b32 s18, s28, 16"); a("s_lshl2_add_u32 s28, s18, s17")
        a("s_lshl_b32 s17, s28, 1"); a("v_xor_b32 v4, s17, v4"); a("s_lshl_b32 s28, s28, 13")
    a("v_xor_b32 v14, 0x80, v4")
    def colbase(dst):
        if zm == 0:
            a("s_bfe_u32 s17, s2, 0x20004"); a("s_lshl_b32 s17, s17, 7"); a("s_and_b32 s18, s2, 15"); a("s_add_u32 s17, s17, s18"); a(f"s_lshl_b32 {dst}, s17, 1")
        elif zm == 3:
            a("s_and_b32 s17, s2, 15"); a(f"s_lshl_b32 {dst}, s17, 6")
        elif zm == 2:
            a("s_bfe_u32 s17, s2, 0x30003"); a("s_lshl_b32 s17, s17, 5"); a("s_and_b32 s18, s2, 7"); a("s_add_u32 s17, s17, s18"); a(f"s_lshl_b32 {dst}, s17, 2")
        elif cont:
            a(f"s_lshl_b32 {dst}, s22, 5")
        else:
            a("s_bfe_u32 s17, s2, 0x30002"); a("s_lshl_b32 s17, s17, 4"); a("s_and_b32 s18, s2, 3"); a("s_add_u32 s17, s17, s18"); a(f"s_lshl_b32 {dst}, s17, 3")
    colbase("s19")
    NC = (8, 16, 8, 32)[zm]
    if zm == 0:
        a("v_and_b32 v5, 7, v1"); a("v_lshl_add_u32 v5, v5, 5, s19")
    elif zm == 3: a("v_and_b32 v5, 31, v1"); a("v_lshl_add_u32 v5, v5, 1, s19")
    elif zm == 2:
        a("v_and_b32 v5, 6, v1"); a("v_and_b32 v12, 1, v1"); a("v_lshl_add_u32 v5, v5, 3, v12"); a("v_lshl_add_u32 v5, v5, 1, s19")
    elif cont: a("v_lshl_add_u32 v5, v7, 1, s19")
    else:
        a("v_and_b32 v5, 12, v1"); a("v_and_b32 v12, 3, v1"); a("v_lshl_add_u32 v5, v5, 2, v12"); a("v_lshl_add_u32 v5, v5, 1, s19")
    a("s_lshl_b32 s17, s21, 10"); a("s_mov_b32 s10, 0x400000")
    a("s_waitcnt lgkmcnt(0)")
    if nb: a("s_barrier")
    a(f"s_add_u32 s30, s{X_}, s17"); a(f"s_addc_u32 s31, s{X_+1}, 0")
    a(f"s_mov_b32 s8, s{WQ_}"); a(f"s_mov_b32 s9, s{WQ_+1}")
    stamp(7, 2)
    a(f"s_lshl_b32 s18, s21, {cst}"); a("v_mov_b32 v10, s18")
    a("v_mov_b32 v11, 1"); a("v_mov_b32 v9, 0")
    def clear4():
        a("; mark this workgroup's hand-off words (z inbox, softmax word) as empty")
        a("v_mov_b32 v220, -1"); a("v_mov_b32 v221, -1"); a("v_mov_b32 v222, -1"); a("v_mov_b32 v223, -1")
        a("s_lshl_b32 s17, s2, 11"); a("s_lshl_b32 s18, s16, 9"); a("s_add_u32 s17, s17, s18"); a("v_add_u32 v224, s17, v3")
        a(f"s_lshl_b32 s17, s2, 7"); a(f"s_add_u32 s17, s17, {ML_OFF}"); a("v_writelane_b32 v224, s17, 32")
        a("s_cmp_eq_u32 s16, 0"); a("s_cselect_b32 exec_hi, 1, 0")
        a(f"global_store_dwordx4 v224, v[220:223], {sp(WS_)} sc1")
        a("s_mov_b64 exec, -1")
    if clr == "first": clear4()
    def xloads():
        a(f"global_load_dwordx4 v[160:163], v3, s[30:31] {xpol}")
        a(f"global_load_ushort v164, v4, s[30:31] {xpol}"); a(f"global_load_ushort v165, v14, s[30:31] {xpol}")
        a(f"global_load_ushort v166, v5, s[30:31] {xpol}")
    if not xlate: xloads()
    if xw: a("s_waitcnt vmcnt(0)")
    def wqissue(t, qpol=qpol):
        if wqnt == 2 and t < 4: qpol = "nt"
        if wqrot: a(f"s_xor_b32 s25, s28, {((t >> 4) * 64 + (t & 15)) * 8192}")
        else: a(f"s_mov_b32 s25, {((t >> 4) * 64 + (t & 15)) * 8192}")
        a(f"buffer_load_dwordx4 {slot(t)}, v2, s[8:11], s25 offen {qpol}")
    if wqnt == 1:
        for t in range(4): wqissue(t, "nt")
        a("s_waitcnt vmcnt(0)")
    for t in range(max(wqwin, wq0 & 15)):
        if h0 is not None and t == h0: a("s_waitcnt vmcnt(0)")
        wqissue(t)
    if hl: a("s_load_dwordx8 s[48:55], s[0:1], 64"); a("s_load_dwordx2 s[56:57], s[0:1], 96")
    if xpf:
        a("; one line of x per workgroup into L2 through the scalar path")
        a("s_cmp_lg_u32 s16, 0"); a("s_cbranch_scc1 L_noxpf")
        a("s_lshr_b32 s17, s2, 3"); a("s_lshl_b32 s17, s17, 7"); a(f"s_load_dword s6, {sp(X_)}, s17")
        if mpf:
            a("s_min_u32 s17, s17, 2748")
            for ptr in (W1_, B1_, W2_): a(f"s_load_dword s6, {sp(ptr)}, s17")
        a("L_noxpf:")
    if clr == "second": clear4()
    if clr == "start" and not nox & 4:
        a("s_cmp_lg_u32 s16, 3"); a("s_cbranch_scc1 L_noclear")
        clear()
        a("L_noclear:")
    def codepf():
        a("s_getpc_b64 s[4:5]"); lab[0] += 1
        a(f"L_pc{lab[0]}:")
        assert not order
        a(f"s_add_u32 s4, s4, L_end-L_pc{lab[0]}"); a("s_addc_u32 s5, s5, 0")
        a("s_lshr_b32 s7, s2, 3"); a(f"s_mul_i32 s7, s7, {128*cpf}"); a(f"s_add_u32 s7, s7, {128*(cpf-1)}")
        a("s_sub_u32 s4, s4, s7"); a("s_subb_u32 s5, s5, 0")
        for k in range(cpf): a(f"s_load_dword s6, s[4:5], {128*k}")
    if cpf:
        a("; pull this kernel's code into L2 (one slice per workgroup)")
        a("s_cmp_lg_u32 s16, 3"); a("s_cbranch_scc1 L_nopf"); codepf(); a("L_nopf:")
    if touch:
        a("; warm the address translation (scalar path) of the buffers first used later")
        a("s_cmp_lg_u32 s16, 2"); a("s_cbranch_scc1 L_notouch")
        a("s_lshl_b32 s14, s27, 21"); a("s_lshl_b32 s17, s22, 17")
        for ptr, off in ((V_, "s14"), (WO_, "s17"), (WS_, "0xf0000"), (OUT_, "0"), (DBG_, "128"), (W1_, "0"), (B1_, "0"), (W2_, "0"), (B2_, "0")):
            if ptr in (OUT_,) and not touch & 2: continue
            if ptr in (B2_,): continue
            a(f"s_load_dword s4, {sp(ptr)}, {off}")
        a("L_notouch:")
    masks("v12", "v13")
    if rootst:
        a("s_lshl_b32 s17, s24, 2"); a("s_add_u32 s17, s17, s16"); a("s_cmp_lg_u32 s17, 1"); a("s_cbranch_scc1 L_noroot")
        if hl: a("s_waitcnt lgkmcnt(0)")
        rootinit(); a("s_mov_b64 exec, -1"); a("L_noroot:")
    a(f"v_mov_b32 v8, {FL}"); a("v_lshl_add_u32 v8, s16, 2, v8")
    if not nb:
        a("ds_write_b32 v8, v9")
        if rk: a(f"ds_write_b32 v9, v9 offset:{BO}"); a(f"ds_write_b32 v9, v9 offset:{BO+4}")
    stamp(8, 2)
    n = max(wqwin, wq0 & 15)
    if wq0 & 16: a("s_waitcnt vmcnt(0)")
    if xlate:
        while n < xlate:
            a(f"s_waitcnt vmcnt({wqwin-1})"); wqissue(n); n += 1
        xloads()
        for k in range(wqwin):
            a(f"s_waitcnt vmcnt({wqwin+3})"); wqissue(n); n += 1
        a(f"s_waitcnt vmcnt({wqwin-1})"); wqissue(n); n += 1
    else:
        for t in range(n, n + wqwin):
            a(f"s_waitcnt vmcnt({wqwin-1})"); wqissue(t); n += 1
    stamp(9, 2)
    for k in range(4):
        a(f"v_lshlrev_b32 {X[2*k]}, 16, v{160+k}"); a(f"v_and_b32 {X[2*k+1]}, 0xffff0000, v{160+k}")
    for k in range(3): a(f"v_lshlrev_b32 v{164+k}, 16, v{164+k}")
    lnstats("v184", "v185")
    norm("v22", "v164", "v184", "v185", True); norm("v23", "v165", "v184", "v185", True)
    stamp(7); stamp(10, 2)
    for t in range(32):
        sel("v22" if t < 16 else "v23", t & 15)
        if n < 32 and (not xlate or t % 3 == 0 or n - t <= wqwin + 1):
            a(f"s_waitcnt vmcnt({wqwin - 1 - (n >= wqsw)})"); wqissue(n); n += 1
        elif n == 32: a(f"s_waitcnt vmcnt({31-t})")
        assert n == 32 or n - t > wqwin
        a(f"v_mfma_f32_16x16x32_bf16 v[28:31], v[24:27], {slot(t)}, {'0' if t == 0 else 'v[28:31]'}")
        if t == 15: stamp(11, 2)
        if t == 0:
            a("v_lshlrev_b32 v176, 5, v7"); a("v_and_b32 v177, 16, v1"); a("s_lshl_b32 s17, s16, 9")
            a("v_add3_u32 v176, v176, v177, s17")
    stamp(12, 2)
    a(f"ds_write_b128 v176, v[28:31] offset:{QP}")
    if nb:
        a("s_mov_b64 exec, 1"); a(f"ds_add_u32 v9, v11 offset:{BO+8}"); a("s_mov_b64 exec, -1")
    else:
        a("s_waitcnt lgkmcnt(0)")
        a("s_barrier")
    stamp(8)
    if clr == "late4": clear4(); a("s_waitcnt vmcnt(0)")
    if clr == "late" and not nox & 4:
        a(f"s_cmp_lg_u32 s16, {1 if root else 3}"); a("s_cbranch_scc1 L_noclear")
        jitter(5, 31, 3)
        clear()
        if not (o1 and early): a("s_waitcnt vmcnt(0)")
        a("L_noclear:")
    if PL and nb:
        a(f"s_mov_b32 s26, {SPIN_MAX*8}")
        a("L_swait:")
        a("s_sleep 4")
        a("ds_read_b32 v188, v8")
        a("s_sub_u32 s26, s26, 1"); a("s_cbranch_scc1 L_sdone")
        a("s_waitcnt lgkmcnt(0)")
        a("v_cmp_eq_u32 vcc, 0, v188"); a("s_cbranch_vccnz L_swait")
        a("L_sdone:")
    elif PL: a("s_barrier")
    a(f"s_mov_b32 s8, s{WO_}"); a(f"s_mov_b32 s9, s{WO_+1}")
    a("s_lshl_b32 s17, s22, 17"); a("s_lshl_b32 s18, s16, 8"); a("s_add_u32 s17, s17, s18")
    a("v_lshlrev_b32 v2, 10, v6"); a("v_lshl_add_u32 v2, v7, 4, v2"); a("v_add_u32 v2, s17, v2")
    a("s_lshl_b32 s13, s16, 15"); a(f"s_add_u32 s13, s13, {WO}")
    a("s_mov_b32 s26, 0"); a(f"s_mul_i32 s28, s15, {worot}")
    if rlow & 2: a("s_and_b32 s17, s15, 3"); a("s_or_b32 s28, s28, s17")
    if rlow & 4: a("s_add_u32 s17, s15, s16"); a("s_and_b32 s17, s17, 3"); a("s_or_b32 s28, s28, s17")
    if not root:
        if stag: a("s_lshr_b32 s12, s2, 3")
        else: a("s_mov_b32 s12, 0")
        a("s_cmp_eq_u32 s16, 3"); a("s_cselect_b32 s12, s12, -1")
    if wont:
        a("; own eighth first, non-temporal; the plain loads below then hit in L2")
        for k in range(4):
            a(f"s_xor_b32 s17, s28, {k}"); a("s_lshl_b32 s25, s17, 12"); a("s_lshl_b32 s17, s17, 10"); a("s_add_u32 m0, s13, s17")
            a(f"buffer_load_dwordx4 v2, s[8:11], s25 offen nt lds")
        a("s_waitcnt vmcnt(0)")
        if wont == 2: a("s_mov_b32 s26, 4")
    if early:
        a("s_mov_b32 s12, -1")
        if ic or sm: a(f"s_mov_b32 s29, {32 if sm else 0}")
        a(f"s_mov_b32 s4, {rk & 0xffffffff:#x}"); a(f"s_mov_b32 s5, {rk >> 32:#x}")
        a(f"s_mul_i32 s7, s21, {64 * RK_STR}"); a(f"s_add_u32 s7, s7, {RK_OFF - RK_STR}")
        a("s_cmp_lg_u32 s16, 1"); a("s_cbranch_scc1 L_wo")
        flagwait("L_wo")
        nextmark()
    a("L_wo:")
    a("s_xor_b32 s17, s26, s28"); a("s_lshl_b32 s25, s17, 12"); a("s_lshl_b32 s17, s17, 10"); a("s_add_u32 m0, s13, s17")
    if wo0:
        a(f"s_cmp_lt_u32 s26, {wo0 & 15}"); a("s_cbranch_scc1 L_wonow")
        if wo0 & 16:
            a(f"s_cmp_lg_u32 s26, {wo0 & 15}"); a("s_cbranch_scc1 L_wowait"); a("s_waitcnt vmcnt(0)"); a("L_wowait:")
    a(f"s_waitcnt vmcnt({wowin-1})")
    if wo0: a("L_wonow:")
    if not nox & 16: a(f"buffer_load_dwordx4 v2, s[8:11], s25 offen {wpol} lds")
    if not root:
        a("s_cmp_lg_u32 s26, s12"); a("s_cbranch_scc1 L_nocount")
        if not nox & 4:
            a("s_mov_b64 exec, 1"); a(f"global_atomic_add v10, v11, {sp(DBG_)} sc1"); a("s_mov_b64 exec, -1")
        a("L_nocount:")
    if early:
        a(f"ds_read_b32 v188, v9 offset:{FL}"); a("s_waitcnt lgkmcnt(0)")
        a("v_cmp_gt_u32 vcc, s12, v188"); a("s_cbranch_vccnz L_notick")
        ticket(ths0 or ths)
        a("L_notick:")
    a("s_add_u32 s26, s26, 1"); a("s_cmp_lt_u32 s26, 32"); a("s_cbranch_scc1 L_wo")
    a("v_lshlrev_b32 v13, 3, v6"); a("v_bfe_u32 v12, v1, 2, 2"); a("v_add_u32 v13, v13, v12")
    a("v_lshlrev_b32 v13, 8, v13"); a("v_and_b32 v12, 3, v1"); a(f"v_lshl_add_u32 v13, v12, {6 if zm == 3 else 5 if cont else 3}, v13"); a("v_add_u32 v13, s13, v13")
    a("s_waitcnt vmcnt(0)")
    for T in range(8):
        for ks in range(4):
            r = RING + 16 * T + 4 * ks
            to = T * 8 if zm == 3 else (T >> 2) * 128 + (T & 3) * 8 if cont else T * 32
            a(f"ds_read_b64_tr_b16 v[{r}:{r+1}], v13 offset:{ks*8192 + to}")
            a(f"ds_read_b64_tr_b16 v[{r+2}:{r+3}], v13 offset:{ks*8192 + 1024 + to}")
        a("s_waitcnt lgkmcnt(0)")
    stamp(9)
    if zm == 1: a("s_cmp_lg_u32 s23, 0"); a("s_cbranch_scc1 L_nomix")
    if zm == 3: a("s_cmp_ge_u32 s24, 16"); a("s_cbranch_scc1 L_nomix")
    NE = 8 if mix3 else 6
    if mix3: a("s_cmp_eq_u32 s16, 1"); a("s_cbranch_scc1 L_nomix")
    a("s_mov_b32 s10, 2752")
    if mix3:
        a("s_max_u32 s14, s16, 1"); a("s_sub_u32 s14, s14, 1"); a("s_lshl_b32 s17, s14, 10"); a("v_add_u32 v12, s17, v3")
    else:
        a("s_mov_b32 s14, s16"); a("s_mul_i32 s17, s16, 768"); a("v_mul_u32_u24 v12, 12, v1"); a("v_add_u32 v12, s17, v12")
    for q, (reg, ptr) in enumerate(((188, W1_), (192, B1_), (196, W2_))):
        a(f"s_mov_b32 s8, s{ptr}"); a(f"s_mov_b32 s9, s{ptr+1}")
        a(f"buffer_load_dwordx{NE//2} v[{reg}:{reg+NE//2-1}], v12, s[8:11], 0 offen {xpol}")
    a(f"global_load_ushort v167, v9, {sp(B2_)} {xpol}")
    for k in range(8): norm(X[k], X[k], "v184", "v185")
    norm("v186", "v166", "v184", "v185")
    lnstats("v184", "v185")
    norm("v186", "v186", "v184", "v185")
    a("s_waitcnt vmcnt(0)")
    for q, base in enumerate((188, 192, 196)):
        for e in range(NE):
            d = 224 + 8 * q + e
            if e & 1: a(f"v_and_b32 v{d}, 0xffff0000, v{base + e//2}")
            else: a(f"v_lshlrev_b32 v{d}, 16, v{base + e//2}")
    a("v_lshlrev_b32 v167, 16, v167"); a(f"v_and_b32 v12, {NC-1}, v1"); a("v_lshlrev_b32 v12, 3, v12")
    a(f"ds_write_b64 v12, v[166:167] offset:{MX}")
    C0 = -2.0 * math.sqrt(2.0 / math.pi) * LOG2E
    a(f"v_mov_b32 v218, {f2h(C0 * 0.044715)}"); a(f"v_mov_b32 v219, {f2h(C0)}")
    a("s_mov_b32 s26, 0"); a("s_lshl_b32 s17, s14, 2"); a("v_mov_b32 v12, s17")
    if nox & 32: a("s_branch L_nomix")
    a("L_mix:")
    a("v_readlane_b32 s18, v186, s26")
    seq = []
    for e in range(NE):
        u, t = f"v{188+2*e}", f"v{189+2*e}"
        seq.append([f"v_mul_f32 {u}, s18, v{224+e}", f"v_cvt_pk_bf16_f32 {u}, 0, {u}", f"v_add_f32 {u}, {u}, v{232+e}",
                    f"v_cvt_pk_bf16_f32 {u}, 0, {u}", f"v_mul_f32 {t}, {u}, {u}", f"v_fma_f32 {t}, {t}, v218, v219",
                    f"v_mul_f32 {t}, {t}, {u}", f"v_exp_f32 {t}, {t}", f"v_add_f32 {t}, 1.0, {t}", f"v_rcp_f32 {t}, {t}",
                    f"v_mul_f32 {t}, {t}, {u}", f"v_cvt_pk_bf16_f32 {t}, 0, {t}",
                    (f"v_mul_f32 v187, {t}, v240" if e == 0 else f"v_fmac_f32 v187, {t}, v{240+e}")])
    for col in zip(*seq):
        for x in col: a(x)
    wavered("v187", "s17")
    a("v_mov_b32 v187, s17")
    a(f"ds_write_b32 v12, v187 offset:{MP}")
    a("v_add_u32 v12, 16, v12")
    a("s_add_u32 s26, s26, 1"); a(f"s_cmp_lt_u32 s26, {NC}"); a("s_cbranch_scc1 L_mix")
    a("L_nomix:")
    stamp(10)
    jitter(10, 7, 1, 5, 20)
    a("v_and_b32 v12, 3, v1"); a("v_mul_u32_u24 v12, 320, v12"); a("v_lshl_add_u32 v12, v6, 4, v12")
    a("s_lshl_b32 s17, s21, 6"); a("s_lshl_b32 s18, s16, 4"); a("s_add_u32 s17, s17, s18"); a("s_lshl_b32 s17, s17, 11")
    if zm == 0:
        a("s_lshl_b32 s18, s24, 4"); a("s_add_u32 s17, s17, s18")
        a("v_lshl_add_u32 v216, v7, 11, s17"); a("v_add_u32 v217, 1024, v216")
    elif zm == 3:
        a("s_lshr_b32 s17, s17, 1"); a(f"s_lshl_b32 s18, s24, {7 if zl else 6}"); a("s_add_u32 s17, s17, s18")
        if zl: a("v_and_b32 v216, 8, v1"); a("v_and_b32 v217, 7, v1")
        else: a("v_and_b32 v216, 12, v1"); a("v_and_b32 v217, 3, v1")
        a("v_lshl_add_u32 v216, v216, 6, v217"); a("v_lshl_add_u32 v217, v216, 4, s17")
    elif zm == 2:
        a("s_lshl_b32 s18, s24, 5"); a("s_add_u32 s17, s17, s18")
        a("v_and_b32 v216, 14, v1"); a("v_and_b32 v217, 1, v1"); a("v_lshl_add_u32 v216, v216, 6, v217"); a("v_lshl_add_u32 v216, v216, 4, s17")
        a("v_add_u32 v217, 0x4000, v216")
    else:
        a("s_lshl_b32 s18, s24, 6"); a("s_add_u32 s17, s17, s18")
        a("v_and_b32 v216, 12, v1"); a("v_and_b32 v217, 3, v1"); a("v_lshl_add_u32 v216, v216, 6, v217"); a("v_lshl_add_u32 v216, v216, 4, s17")
        a("v_add_u32 v217, 0x4000, v216")
    if rk:
        assert nsh == 2 and root and not WT
        a("; ---- helper 1: at chosen progress marks draw a ticket among the workgroups of the batch; late ones prefetch deeper")
        a("s_cmp_lg_u32 s16, 1"); a("s_cbranch_scc1 L_noctl")
        if not early:
            flagwait("L_tail")
            a(f"s_mov_b32 s4, {rk & 0xffffffff}"); a(f"s_mov_b32 s5, {rk >> 32}")
            a(f"s_mul_i32 s7, s21, {64 * RK_STR}"); a(f"s_add_u32 s7, s7, {RK_OFF - RK_STR}"); nextmark()
        a("L_ctl:")
        a("s_cmp_lt_i32 s12, 0"); a("s_cbranch_scc1 L_tail")
        a(f"s_mov_b32 s26, {SPIN_MAX*8}")
        a("L_pwait:")
        a(f"s_sleep {cslp}")
        a(f"ds_read_b32 v188, v9 offset:{FL}")
        a("s_sub_u32 s26, s26, 1"); a("s_cbranch_scc1 L_tail")
        a("s_waitcnt lgkmcnt(0)")
        a("v_cmp_gt_u32 vcc, s12, v188"); a("s_cbranch_vccnz L_pwait")
        ticket(ths, True)
        a("s_branch L_ctl")
        a("L_noctl:")
    a("s_cmp_lg_u32 s16, 0"); a("s_cbranch_scc1 L_tail")
    def ldspoll(name, need):
        a(f"s_mov_b32 s26, {SPIN_MAX*4}")
        a(f"L_{name}:")
        a(f"s_sleep {fslp}")
        a(f"ds_read_b128 v[188:191], v9 offset:{FL}")
        a("s_sub_u32 s26, s26, 1"); a(f"s_cbranch_scc1 L_{name}_out")
        a("s_waitcnt lgkmcnt(0)")
        a("v_min_u32 v188, v188, v189"); a("v_min3_u32 v188, v190, v191, v188")
        a(f"v_cmp_gt_u32 vcc, {need}, v188"); a(f"s_cbranch_vccnz L_{name}")
        a(f"L_{name}_out:")
        a("s_waitcnt lgkmcnt(0)")
    ldspoll("kwait", 256 // G)
    CB = DBG_
    if root:
        a("; the counters are zeroed once the flag is up; the first one counts workgroups that have marked their words empty")
        a(f"s_mov_b32 s26, {SPIN_MAX * (16 if bochk else 1)}")
        a("L_rpoll:")
        if bochk: a(f"ds_read_b32 v220, v9 offset:{BO}")
        else: a(f"global_load_dword v220, v10, {sp(DBG_)} sc1")
        a("s_sub_u32 s26, s26, 1"); a("s_cbranch_scc1 L_rdone")
        a("s_waitcnt vmcnt(0) lgkmcnt(0)")
        a("v_cmp_gt_u32 vcc, 1, v220"); a("s_cbranch_vccnz L_rpoll")
        a("L_rdone:")
        a("s_waitcnt vmcnt(0) lgkmcnt(0)")
        a(f"s_mul_i32 s17, s21, {64 * RK_STR}"); a(f"s_add_u32 s17, s17, {RK_OFF}"); a("v_mov_b32 v10, s17"); CB = WS_
    if sfl & 2: a("s_mov_b32 s7, s17")
    elif not nox & 4: a(f"global_load_dword v220, v10, {sp(CB)} sc1")
    a(f"s_mov_b32 s18, {f2h(SCALE)}"); a(f"s_mov_b32 s15, {f2h(LOG2E)}")
    a("s_mov_b32 s26, 0"); a("v_mov_b32 v13, v3"); a("v_mov_b32 v206, 0"); a("v_mov_b32 v207, 0")
    a("L_stat:")
    for k in range(4): a(f"ds_read_b128 v[{188+4*k}:{191+4*k}], v13 offset:{1024*k}")
    a("v_add_u32 v13, 4096, v13")
    a("s_waitcnt lgkmcnt(0)")
    S = [f"v{188+k}" for k in range(16)]
    a(f"v_max3_f32 v204, {S[0]}, {S[1]}, {S[2]}")
    for k in range(3, 15, 2): a(f"v_max3_f32 v204, {S[k]}, {S[k+1]}, v204")
    a(f"v_max_f32 v204, {S[15]}, v204")
    wavered("v204", "s17", "v_max_f32")
    rnd("v204", "s17"); a("v_mul_f32 v204, s18, v204"); rnd("v204", "v204"); a("v_mul_f32 v204, s15, v204")
    for v in S: rnd(v, v)
    for v in S: a(f"v_mul_f32 {v}, s18, {v}")
    for v in S: rnd(v, v)
    for v in S: a(f"v_fma_f32 {v}, {v}, s15, -v204")
    for v in S: a(f"v_exp_f32 {v}, {v}")
    for st in (8, 4, 2, 1):
        for k in range(st): a(f"v_add_f32 {S[k]}, {S[k]}, {S[k+st]}")
    wavered(S[0], "s17")
    a("v_and_b32 v205, 3, v1"); a("v_cmp_eq_u32 vcc, s26, v205"); a("v_mov_b32 v205, s17")
    a("v_cndmask_b32 v206, v206, v204, vcc")
    a("v_cndmask_b32 v207, v207, v205, vcc")
    a("s_add_u32 s26, s26, 1"); a("s_cmp_lt_u32 s26, 4"); a("s_cbranch_scc1 L_stat")
    a("v_mov_b32 v208, v206")
    for d in ("quad_perm:[1,0,3,2]", "quad_perm:[2,3,0,1]"): a(f"v_max_f32_dpp v208, v208, v208 {d} {FULL}")
    a("v_sub_f32 v209, v206, v208"); a("v_exp_f32 v209, v209"); a("v_mul_f32 v209, v209, v207")
    for d in ("quad_perm:[1,0,3,2]", "quad_perm:[2,3,0,1]"): a(f"v_add_f32_dpp v209, v209, v209 {d} {FULL}")
    jitter(6, 15, 7)
    a("; all hand-off words of this batch marked empty?")
    if sfl & 2:
        a(f"s_mov_b32 s26, {SPIN_MAX}")
        a("L_cpoll:")
        a(f"s_load_dword s17, {sp(WS_)}, s7 glc")
        a("s_sub_u32 s26, s26, 1"); a("s_waitcnt lgkmcnt(0)"); a("s_cbranch_scc1 L_cdone")
        a("s_cmp_lt_u32 s17, 64"); a("s_cbranch_scc1 L_cpoll")
        a("L_cdone:")
    elif not nox & 4:
        a(f"s_mov_b32 s26, {SPIN_MAX}")
        a("L_cpoll:")
        a("s_waitcnt vmcnt(0)")
        a("v_cmp_gt_u32 vcc, 64, v220"); a("s_cbranch_vccz L_cdone")
        a(f"global_load_dword v220, v10, {sp(CB)} sc1")
        a("s_sub_u32 s26, s26, 1"); a("s_cbranch_scc0 L_cpoll")
        a("L_cdone:")
    a(f"s_lshl_b32 s17, s2, 7"); a(f"s_add_u32 s17, s17, {ML_OFF}"); a("v_mov_b32 v210, s17"); a("v_xor_b32 v211, 0x1000, v210")
    if not nox & 2:
        a("v_min_u32 v208, -2, v208"); a("v_min_u32 v209, -2, v209")
        a("s_mov_b64 exec, 1")
        a(f"global_store_dwordx2 v210, v[208:209], {sp(WS_)} sc1")
        a("s_mov_b64 exec, -1")
    ldspoll("vwait", (256 + 16 * mlit) // G)
    if sfl & 4:
        a(f"s_mov_b32 s26, {SPIN_MAX}"); a("s_xor_b32 s7, s17, 0x1000")
        a("L_mpoll:")
        a(f"s_load_dwordx2 s[4:5], {sp(WS_)}, s7 glc")
        a("s_sub_u32 s26, s26, 1"); a("s_waitcnt lgkmcnt(0)"); a("s_cbranch_scc1 L_mdone")
        a("s_max_u32 s6, s4, s5"); a("s_cmp_eq_u32 s6, -1"); a("s_cbranch_scc1 L_mpoll")
        a("L_mdone:")
        a("v_mov_b32 v212, s4"); a("v_mov_b32 v213, s5")
    elif not nox & 2:
        a(f"s_mov_b32 s26, {SPIN_MAX}")
        a("L_mpoll:")
        a(f"global_load_dwordx2 v[212:213], v211, {sp(WS_)} sc1")
        a("s_sub_u32 s26, s26, 1"); a("s_cbranch_scc1 L_mdone")
        a("s_waitcnt vmcnt(0)")
        a("v_max_u32 v214, v212, v213"); a("v_cmp_eq_u32 vcc, -1, v214")
        a("s_cbranch_vccnz L_mpoll")
        a("L_mdone:")
    a("s_waitcnt vmcnt(0)")
    a("v_max_f32 v214, v208, v212")
    a("v_sub_f32 v208, v208, v214"); a("v_sub_f32 v212, v212, v214"); a("v_sub_f32 v206, v206, v214")
    a("v_exp_f32 v208, v208"); a("v_exp_f32 v212, v212"); a("v_exp_f32 v206, v206")
    a("v_mul_f32 v209, v208, v209"); a("v_fmac_f32 v209, v212, v213")
    a("v_rcp_f32 v209, v209"); a("v_and_b32 v205, 3, v1"); a("v_lshlrev_b32 v205, 2, v205"); a("v_mul_f32 v206, v206, v209")
    a(f"ds_write_b32 v205, v206 offset:{FW}")
    a("L_tail:")
    if tprio: a(f"s_setprio {tprio}")
    stamp(11)
    if dry:
        a("; first pass without barrier and stores only brings the code below into the instruction cache")
        a("s_mov_b64 vcc, -1"); a("s_branch L_zgo")
        a("L_zreal:"); a("s_mov_b64 vcc, 0")
    a("s_waitcnt lgkmcnt(0)")
    a("s_barrier")
    if dry: a("L_zgo:")
    if diag is not None: stamp(11)
    jitter(7, 31, 11, 5, 3)
    for ks in range(4): a(f"ds_read_b128 v[{192+4*ks}:{195+4*ks}], v12 offset:{OB + 64*ks}")
    a(f"ds_read_b128 v[220:223], v9 offset:{FW}")
    def zfin(T):
        d = 160 + 4 * T
        a(f"v_mul_f32 v{208+T}, v220, v{d}")
        for w in range(1, 4): a(f"v_fmac_f32 v{208+T}, v{220+w}, v{d+w}")
        if zm == 3 and T & 1: a(f"v_cvt_pk_bf16_f32 v{224+T//2}, v{207+T}, v{208+T}")
    if o2:
        assert zm == 3
        def zops(T):
            d = 160 + 4 * T
            ops = [f"v_mul_f32 v{208+T}, v220, v{d}"] + [f"v_fmac_f32 v{208+T}, v{220+w}, v{d+w}" for w in range(1, 4)]
            if T & 1:
                ops.append(f"v_cvt_pk_bf16_f32 v{224+T//2}, v{207+T}, v{208+T}")
                ops.append(f"v_min_u32 v{224+T//2}, -2, v{224+T//2}")
            return ops
        pendz = []
        for T in range(8):
            d = f"v[{160+4*T}:{163+4*T}]"
            for ks in range(4):
                if T == 0: a(f"s_waitcnt lgkmcnt({4-ks})")
                r = RING + 16 * T + 4 * ks
                a(f"v_mfma_f32_16x16x32_bf16 {d}, v[{192+4*ks}:{195+4*ks}], v[{r}:{r+3}], {'0' if ks == 0 else d}")
                if T == 1 and ks == 0: a("s_waitcnt lgkmcnt(0)")
                if (T, ks) == (2, 2) or (T > 2 and ks == 0): pendz += zops(T - 2)
                for _ in range(2 if len(pendz) > 4 - ks else 1):
                    if pendz: a(pendz.pop(0))
        for x in pendz + zops(6) + zops(7): a(x)
    else:
        for T in range(8):
            d = f"v[{160+4*T}:{163+4*T}]"
            for ks in range(4):
                if T == 0: a(f"s_waitcnt lgkmcnt({4-ks})")
                r = RING + 16 * T + 4 * ks
                if nox & 1024 and ks >= 2: continue
                a(f"v_mfma_f32_16x16x32_bf16 {d}, v[{192+4*ks}:{195+4*ks}], v[{r}:{r+3}], {'0' if ks == 0 else d}")
            if T == 1: a("s_waitcnt lgkmcnt(0)")
            if T >= 2: zfin(T - 2)
            if T == 5 and not nox & (8 | 512) and zm != 3:
                if dry: a("s_cbranch_vccnz L_zs1")
                a("s_mov_b64 exec, 0xffff"); a(f"global_store_dwordx4 v216, v[208:211], {sp(WS_)} {zst}"); a("s_mov_b64 exec, -1")
                if dry: a("L_zs1:")
        zfin(6); zfin(7)
    if dry: a("s_cbranch_vccnz L_zreal")
    a("s_mov_b64 exec, 0xffff")
    if not nox & 8: a(f"global_store_dwordx4 v217, {'v[224:227]' if zm == 3 else 'v[212:215]'}, {sp(WS_)} {zst}")
    if stamps:
        stamp(12); a("s_waitcnt vmcnt(0)"); stamp(13)
        a("s_cmp_lg_u32 s16, 0"); a("s_cbranch_scc1 L_end")
        if diag is None: dump_stamps([7, 8, 9, 10, 11, 12, 13])
        elif diag >= 7: diag_exit()
    a("s_endpgm")

    mark1 = len(a.L)
    a("L_stream:")
    def ssetup():
        late()
        a(f"s_add_u32 s12, s{V_}, s14"); a(f"s_addc_u32 s13, s{V_+1}, 0")
        a("s_lshl_b32 s16, s20, 12")
        a("v_lshrrev_b32 v12, 4, v1"); a("v_lshlrev_b32 v12, 6, v12"); a("v_and_b32 v13, 12, v1")
        a("v_add3_u32 v3, v12, v13, s16")
        a("v_lshl_add_u32 v4, v1, 2, s16")
        a("v_and_b32 v5, 15, v1"); a("v_lshlrev_b32 v5, 5, v5")
        if PL: a("s_lshl_b32 s17, s20, 15"); a(f"s_add_u32 s17, s17, {WO}"); a("s_mov_b32 m0, s17")
    a(f"s_setprio {prio}")
    if nb: a("s_barrier")
    def pissue(t): issue(slot_of(t) if t < PR else None, max(WP - 1, W0 - 1 - (t - W0)))
    for t in range(W0, P - hold):
        if t == W0 + sdef: ssetup()
        pissue(t)
        if t == W0: stamp(3, 2)
        if t == 15: stamp(4, 2)
    if lean: a("s_waitcnt lgkmcnt(0)")
    stamp(5, 2)
    if not nb: a("s_barrier")
    stamp(2); stamp(6, 2); stamp(2, 4)
    held = list(range(P - hold, P))
    if held: pissue(held.pop(0))
    if nb:
        a("v_mov_b32 v15, 0"); a(f"s_mov_b32 s26, {SPIN_MAX*16}")
        a("L_qwait:")
        a(f"ds_read_b32 v14, v15 offset:{BO+8}")
    for p, r in ((0, 6), (1, 16), (2, 24)):
        a(f"ds_read_b128 v[{r}:{r+3}], v5 offset:{QP+512*p}"); a(f"ds_read_b128 v[{r+4}:{r+7}], v5 offset:{QP+512*p+16}")
    if nb:
        a("s_sub_u32 s26, s26, 1"); a("s_cbranch_scc1 L_qgo")
        a("s_waitcnt lgkmcnt(6)"); a("v_cmp_gt_u32 vcc, 4, v14"); a("s_cbranch_vccnz L_qwait")
        a("L_qgo:")
    a("s_waitcnt lgkmcnt(2)")
    for k in range(0, 8, 2): a(f"v_pk_add_f32 v[{6+k}:{7+k}], v[{6+k}:{7+k}], v[{16+k}:{17+k}]")
    a(f"ds_read_b128 v[16:19], v5 offset:{QP+1536}"); a(f"ds_read_b128 v[20:23], v5 offset:{QP+1536+16}")
    a("v_mov_b32 v5, 0xff800000")
    a("s_waitcnt lgkmcnt(0)")
    for k in range(0, 8, 2): a(f"v_pk_add_f32 v[{24+k}:{25+k}], v[{24+k}:{25+k}], v[{16+k}:{17+k}]")
    for k in range(0, 8, 2): a(f"v_pk_add_f32 v[{6+k}:{7+k}], v[{6+k}:{7+k}], v[{24+k}:{25+k}]")
    for k in range(4): a(f"v_cvt_pk_bf16_f32 v{14+k}, v{6+2*k}, v{7+2*k}")
    while held: pissue(held.pop(0))
    def kdot(j, t):
        d = f"v{6 + (t & 3)}"
        a(f"v_dot2_f32_bf16 {d}, {sl(j,0)}, v14, 0")
        for k in range(1, 4): a(f"v_dot2_f32_bf16 {d}, {sl(j,k)}, v{14+k}, {d}")
    def kred(off):
        a(f"v_add_f32_dpp v6, v6, v6 row_ror:8 {FULL}")
        a(f"v_add_f32_dpp v7, v7, v7 row_ror:8 {FULL}")
        a(f"v_add_f32_dpp v6, v8, v8 row_ror:8 row_mask:0xf bank_mask:0xc")
        a(f"v_add_f32_dpp v7, v9, v9 row_ror:8 row_mask:0xf bank_mask:0xc")
        a(f"v_add_f32_dpp v10, v6, v6 row_half_mirror {FULL}")
        a(f"v_add_f32_dpp v10, v7, v7 row_half_mirror row_mask:0xf bank_mask:0xa")
        a(f"v_add_f32_dpp v10, v10, v10 quad_perm:[1,0,3,2] {FULL}")
        a(f"v_add_f32_dpp v10, v10, v10 quad_perm:[2,3,0,1] {FULL}")
        a(f"ds_write_b32 v3, v10 offset:{off}")
        a("v_max_f32 v5, v5, v10")
    issued = P
    def is_free(n, consumed):
        prev = n - P if n < P + 16 else n - 16
        return prev < consumed
    if PL: a("v_lshl_add_u32 v18, v1, 4, s17")
    def stagefree():
        if nb:
            a(f"v_mov_b32 v11, {FL}"); a("v_lshl_add_u32 v11, s20, 2, v11"); a("v_mov_b32 v12, 1")
            a("ds_write_b32 v11, v12")
        else: a("s_barrier")
    LA = 4
    def kred_ops(A, off):
        r = f"v{A+4}"
        return [f"v_add_f32_dpp v{A}, v{A}, v{A} row_ror:8 {FULL}", f"v_add_f32_dpp v{A+1}, v{A+1}, v{A+1} row_ror:8 {FULL}", None,
                f"v_add_f32_dpp v{A}, v{A+2}, v{A+2} row_ror:8 row_mask:0xf bank_mask:0xc",
                f"v_add_f32_dpp v{A+1}, v{A+3}, v{A+3} row_ror:8 row_mask:0xf bank_mask:0xc", None,
                f"v_add_f32_dpp {r}, v{A}, v{A} row_half_mirror {FULL}", None,
                f"v_add_f32_dpp {r}, v{A+1}, v{A+1} row_half_mirror row_mask:0xf bank_mask:0xa", None,
                f"v_add_f32_dpp {r}, {r}, {r} quad_perm:[1,0,3,2] {FULL}", None,
                f"v_add_f32_dpp {r}, {r}, {r} quad_perm:[2,3,0,1] {FULL}", f"ds_write_b32 v3, {r} offset:{off}", f"v_max_f32 v5, v5, {r}"]
    t0 = 0; pend = []; since = cstep
    while fast and issued - (t0 + 4) >= D + 1 and t0 + 4 <= CU:
        t = t0
        if PL and PR <= t + LA < P:
            a(f"s_waitcnt vmcnt({min(issued - 1 - (t + LA + 3), 63)})")
            for n in range(t + LA, t + LA + 4): a(f"ds_read_b128 {slot(slot_of(n))}, v18 offset:{(n - PR) * 1024}")
        if PL and PR <= t < P:
            a(f"s_waitcnt lgkmcnt({4 if t + LA < P else 0})")
            if t + LA >= P: stagefree()
        a(f"s_waitcnt vmcnt({min(issued - 1 - (t + 3), 63)})")
        A = 6 if (t >> 2) & 1 == 0 else 20
        for k in range(4):
            for u in range(4):
                a(f"v_dot2_f32_bf16 v{A+u}, {sl(slot_of(t+u), k)}, v{14+k}, {'0' if k == 0 else f'v{A+u}'}")
                if pend and (k, u) != (0, 0):
                    x = pend.pop(0)
                    if x: a(x)
        for x in pend:
            if x: a(x)
        pend = kred_ops(A, (t >> 4) * 256 + ((t >> 2) & 3) * 16)
        t0 += 4; since += 4
        if since >= cstep and issued < CU + D and is_free(issued, t0):
            issue(slot_of(issued), W - 1); issued += 1; since -= cstep
    for x in pend:
        if x: a(x)
    steps = []
    assert t0 >= P or not o3
    for t in range(t0, CU):
        if PL and t % 4 == 0 and PR <= t + LA < P:
            a(f"s_waitcnt vmcnt({min(issued - 1 - (t + LA + 3), 63)})")
            for n in range(t + LA, t + LA + 4): a(f"ds_read_b128 {slot(slot_of(n))}, v18 offset:{(n - PR) * 1024}")
        if PL and t % 4 == 0 and PR <= t < P:
            a(f"s_waitcnt lgkmcnt({4 if t + LA < P else 0})")
            if t + LA >= P: stagefree()
        while issued < t + D + 1 and issued < CU + D:
            assert is_free(issued, t)
            issue(slot_of(issued), W - 1); issued += 1
        a(f"s_waitcnt vmcnt({min(issued - 1 - t, 63)})")
        kdot(slot_of(t), t)
        if not fast and t % cstep == 0 and issued < CU + D and is_free(issued, t + 1):
            issue(slot_of(issued), W - 1); issued += 1
        if t & 3 == 3: kred((t >> 4) * 256 + ((t >> 2) & 3) * 16)
        else: steps.append(len(a.L))
    assert issued == CU + D
    a(f"v_add_u32 v3, {CU*16}, v3")
    a(f"s_mov_b32 s26, {CU//16}")
    smark0 = len(a.L)
    if hs:
        HS = [(int(x[:-1], 16), int(x[-1])) for x in str(hs).split(".")]; help = len(HS)
        PEER = dict(zip(sorted({p for p, _ in HS}), (31, 28, 29, 4, 5, 6, 7)))
        for pk, reg in PEER.items():
            a(f"s_xor_b32 s{reg}, s14, {(pk >> 1) << 21}")
            if pk & 1: a("s_mul_i32 s30, s23, -65536"); a("s_add_u32 s30, s30, 32768"); a(f"s_add_u32 s{reg}, s{reg}, s30")
    elif help: a("s_mul_i32 s31, s23, -65536"); a("s_add_u32 s31, s31, 32768")
    masks("v12", "v13")
    for k in range(4): a(f"v_mov_b32 v{28+k}, 0")
    a(f"v_mov_b32 v11, {FL}"); a("v_lshl_add_u32 v11, s20, 2, v11"); a(f"v_mov_b32 v12, {CU//G if rk else 32}"); a("v_mov_b32 v105, 0")
    a("v_and_b32 v100, 15, v1"); a("v_lshlrev_b32 v100, 4, v100"); a("v_bfe_u32 v101, v1, 4, 1")
    a("v_lshl_add_u32 v100, v101, 3, v100"); a("s_mul_i32 s16, s20, 320"); a("v_add_u32 v100, s16, v100")
    colbase("s19"); a("s_lshl_b32 s18, s21, 10"); a("s_add_u32 s19, s19, s18")
    if zm == 0:
        a("s_lshl_b32 s16, s2, 11"); a("s_lshl_b32 s17, s20, 10"); a("s_add_u32 s16, s16, s17")
        a("v_lshl_add_u32 v101, v1, 4, s16")
        a("v_lshrrev_b32 v102, 4, v1"); a("s_lshl_b32 s17, s20, 2"); a("v_add_u32 v102, s17, v102")
        a("v_lshlrev_b32 v103, 3, v102"); a("v_lshlrev_b32 v104, 4, v102")
        a("v_lshl_add_u32 v102, v102, 5, s19")
    elif zm == 3:
        if zl:
            a("s_lshl_b32 s16, s21, 16"); a("s_and_b32 s17, s2, 14"); a("s_lshl_b32 s17, s17, 12"); a("s_add_u32 s16, s16, s17")
            a("s_and_b32 s17, s2, 1"); a("s_lshl_b32 s17, s17, 6"); a("s_add_u32 s16, s16, s17"); a("s_addk_i32 s16, 4096")
            a("v_and_b32 v101, 60, v1"); a("v_add_u32 v101, v101, v1"); a("v_lshl_add_u32 v101, v101, 4, s16")
        else:
            a("s_lshl_b32 s16, s21, 16"); a("s_and_b32 s17, s2, 15"); a("s_lshl_b32 s17, s17, 12"); a("s_add_u32 s16, s16, s17")
            a("v_lshl_add_u32 v101, v1, 4, s16")
        a("v_and_b32 v103, 31, v1"); a("v_lshl_add_u32 v102, v103, 1, s19")
        a("v_lshlrev_b32 v104, 4, v103"); a("v_lshlrev_b32 v103, 3, v103")
        for k in range(4): a(f"v_and_b32 v{148+k}, 0x3f803f80, v{18+k}")
        a("s_bfe_u32 s23, s2, 0x20004")
    elif zm == 2:
        a("s_lshl_b32 s16, s2, 11")
        a("v_lshl_add_u32 v101, v1, 4, s16")
        a("v_lshrrev_b32 v102, 4, v1"); a("v_and_b32 v104, 1, v1"); a("v_lshl_add_u32 v103, v102, 1, v104")
        a("v_lshl_add_u32 v102, v102, 4, v104"); a("v_lshl_add_u32 v102, v102, 1, s19")
        a("v_lshlrev_b32 v104, 4, v103"); a("v_lshlrev_b32 v103, 3, v103")
    else:
        a("s_lshl_b32 s16, s21, 17"); a("s_lshl_b32 s17, s22, 12"); a("s_add_u32 s16, s16, s17")
        a("v_lshl_add_u32 v101, v1, 4, s16")
        if cont == 2:
            a("v_and_b32 v103, 15, v1"); a("v_lshl_add_u32 v102, v103, 1, s19")
        else:
            a("v_lshrrev_b32 v102, 4, v1"); a("v_and_b32 v104, 3, v1"); a("v_lshl_add_u32 v103, v102, 2, v104")
            if cont: a("v_lshl_add_u32 v102, v103, 1, s19")
            else: a("v_lshl_add_u32 v102, v102, 4, v104"); a("v_lshl_add_u32 v102, v102, 1, s19")
        a("v_lshlrev_b32 v104, 4, v103"); a("v_lshlrev_b32 v103, 3, v103")
    a(f"s_mov_b32 s18, {f2h(SCALE)}"); a(f"s_mov_b32 s19, {f2h(LOG2E)}")
    if o3:
        blk = a.L[smark0:]; del a.L[smark0:]
        nst = len(steps); per = -(-len(blk) // nst)
        for k in reversed(range(nst)): a.L[steps[k]:steps[k]] = blk[k*per:(k+1)*per]
    if WH and tau:
        a("s_lshl_b32 s58, s64, 4"); a(f"s_add_u32 s58, s58, {c0*16 + tau*(CU//16) - tau//hsub}"); a("s_mov_b64 vcc, 0")
    elif WH and rk: a("s_mov_b64 vcc, 0"); a("s_mov_b64 s[58:59], 0")
    elif WH:
        m = hmask >> (hsub * CU // 16)
        a(f"s_mov_b32 s58, {m & 0xffffffff}"); a(f"s_mov_b32 s59, {m >> 32}")
    stamp(3, 4)
    a("L_kloop:")
    if stamps == 4:
        for it, k in ((8, 4), (11, 5), (14, 6)):
            a(f"s_cmp_lg_u32 s26, {it}"); a(f"s_cbranch_scc1 L_st{k}"); stamp(k, 4); a(f"L_st{k}:")
    for j in range(16):
        setmode(j)
        if j == 16 - D:
            a("s_cmp_eq_u32 s26, 15"); a("s_cselect_b32 s8, s12, s8"); a("s_cselect_b32 s9, s13, s9")
        lissue((j + D) % 16)
        kdot(j, j)
        if j & 3 == 3: kred((j >> 2) * 16)
        if rk and j % G == 0:
            rdmode(); a("ds_write_b32 v11, v12"); a("v_add_u32 v12, 1, v12")
        if rk and j % G == 1:
            a("s_waitcnt lgkmcnt(0)"); cmpmode()
            if tb >> (j >> 3) & 1: a("s_cmp_eq_u32 s26, 15"); a("s_cselect_b64 vcc, -1, vcc")
    a("v_add_u32 v3, 256, v3")
    a("s_add_u32 s26, s26, 1"); a("s_cmp_lt_u32 s26, 16"); a("s_cbranch_scc1 L_kloop")
    jitter(8, 15, 2, 0, 10); jitter(9, 15, 2, 3, 10)
    a("ds_read_b32 v22, v4")
    wavered("v5", "s17", "v_max_f32")
    for k in range(xv): lissue((D + k) % 16)
    D += xv
    rnd("v5", "s17"); a("v_mul_f32 v5, s18, v5"); rnd("v5", "v5"); a("v_mul_f32 v5, s19, v5")
    stamp(3)
    def pcalc(v):
        rnd(v, v); a(f"v_mul_f32 {v}, s18, {v}"); rnd(v, v)
        a(f"v_fma_f32 {v}, {v}, s19, -v5"); a(f"v_exp_f32 {v}, {v}"); a(f"v_cvt_pk_bf16_f32 {v}, {v}, {v}")
    a("s_waitcnt lgkmcnt(0)")
    pcalc("v22")
    sel("v22", 0)
    a("s_mov_b32 s26, 0")
    a("; ---- V loop.  Of the loads of the last trip that would run past the end, the first ones pull the other half's")
    a(";      last tiles into L2 (results unused; helps that workgroup if it is late), the rest go through an empty descriptor")
    a("L_vloop:")
    if stamps == 5:
        for it, k in ((0, 2), (4, 3), (8, 4), (12, 5), (15, 6)):
            a(f"s_cmp_lg_u32 s26, {it}"); a(f"s_cbranch_scc1 L_st{k}"); stamp(k, 5); a(f"L_st{k}:")
    for j in range(16):
        setmode(j)
        if hs and 16 - D <= j < 16 - D + len(HS):
            pk, tk = HS[j - (16 - D)]; imm = soff(cnt[0]) - cur[0]
            if hpol is not None and (pk & 14 or hpol == "all"): altp[0] = ""
            a(f"s_add_u32 s30, s{PEER[pk]}, {soff(255 - tk) - imm}"); a("s_cmp_eq_u32 s26, 15"); a("s_cselect_b32 s25, s30, s25")
            if j == 16 - D:
                a("s_cselect_b64 vcc, -1, vcc")
                a(f"s_cselect_b32 s8, s{V_}, s8"); a(f"s_cselect_b32 s9, s{V_+1}, s9"); a("s_cselect_b32 s10, 0x10000000, s10")
        elif 16 - D <= j < 16 - D + help:
            k = j - (16 - D); imm = soff(cnt[0]) - cur[0]
            a(f"s_add_u32 s30, s31, {soff(255 - k) - imm}"); a("s_cmp_eq_u32 s26, 15"); a("s_cselect_b32 s25, s30, s25")
            if j == 16 - D and WH: a("s_cselect_b64 vcc, -1, vcc")
        if j == 16 - D + help:
            a("s_cmp_eq_u32 s26, 15"); a("s_cselect_b32 s10, 0, s10")
            if WH and not help: a("s_cselect_b64 vcc, -1, vcc")
        lissue((j + D) % 16)
        a(f"v_mfma_f32_16x16x32_bf16 v[28:31], v[24:27], {slot(j)}, v[28:31]")
        if j < 15: sel("v22", j + 1)
        else:
            sel("v23", 0); a("v_mov_b32 v22, v23")
        if j == 0:
            a("ds_read_b32 v23, v4 offset:256"); a("v_add_u32 v4, 256, v4")
        if j == 0 or (rk and j % G == 0):
            if rk: rdmode()
            a("ds_write_b32 v11, v12"); a(f"v_add_u32 v12, {1 if rk else 2}, v12")
        if j == 1:
            a("s_waitcnt lgkmcnt(0)"); pcalc("v23")
        if rk and j % G == 1:
            if j > 1: a("s_waitcnt lgkmcnt(0)")
            cmpmode()
            if tb >> (2 + (j >> 3)) & 1: a("s_cmp_eq_u32 s26, 0"); a("s_cselect_b64 vcc, -1, vcc")
            if endhi:
                first = -(-(32 - endhi - (j >> 3)) // 2)
                a(f"s_cmp_ge_u32 s26, {first}"); a("s_cselect_b64 vcc, -1, vcc")
    a("s_add_u32 s26, s26, 1"); a("s_cmp_lt_u32 s26, 16"); a("s_cbranch_scc1 L_vloop")
    a("v_cvt_pk_bf16_f32 v106, v28, v29"); a("v_cvt_pk_bf16_f32 v107, v30, v31")
    a(f"ds_write_b64 v100, v[106:107] offset:{OB}")
    stamp(4)
    a("s_waitcnt lgkmcnt(0)")
    a("s_barrier")
    stamp(5)
    if zm == 0: a("s_cmp_ge_u32 s20, 2"); a("s_cbranch_scc1 L_end")
    elif zm == 2: a("s_cmp_lg_u32 s20, 0"); a("s_cbranch_scc1 L_end")
    elif stamps: a("s_cmp_lg_u32 s20, 0"); a("s_cbranch_scc1 L_end"); a("s_cmp_lg_u32 s23, 0"); a("s_cbranch_scc1 L_fin")
    else: a("s_or_b32 s17, s20, s23"); a("s_cbranch_scc1 L_end")
    a(f"ds_read_b64 v[108:109], v103 offset:{MX}"); a(f"ds_read_b128 v[112:115], v104 offset:{MP}")
    a(f"s_mov_b32 s26, {SPIN_MAX}")
    a("s_waitcnt lgkmcnt(0)")
    a("v_add_f32 v112, v112, v113")
    if not mix3: a("v_add_f32 v114, v114, v115")
    a("v_add_f32 v112, v112, v114")
    rnd("v112", "v112"); a("v_add_f32 v109, v112, v109"); rnd("v109", "v109")
    if otouch == 1: a(f"global_load_ushort v121, v102, {sp(OUT_)}")
    if otouch == 2: a("s_mov_b32 exec_hi, 0"); a(f"global_store_short_d16_hi v102, v109, {sp(OUT_)}"); a("s_mov_b32 exec_hi, -1")
    if nox & 1: a("s_branch L_zdone")
    NZ = (1, 4, 2, 4)[zm]
    if zsep:
        for u in range(NZ): a(f"s_mov_b64 s[{4+2*u}:{5+2*u}], -1")
    for k in range(zp - 1):
        for u in range(NZ): a(f"global_load_dwordx4 v[{124+4*u}:{127+4*u}], v101, {sp(WS_)} offset:{1024*u} {zld}")
        a(f"s_sleep {zoff}")
    a("L_zpoll:")
    if zslp: a(f"s_sleep {zslp}")
    if zsep:
        for u in range(NZ):
            a(f"s_mov_b64 exec, s[{4+2*u}:{5+2*u}]"); a(f"s_cbranch_execz L_zs{u}")
            a(f"global_load_dwordx4 v[{124+4*u}:{127+4*u}], v101, {sp(WS_)} offset:{1024*u} {zld}")
            a(f"L_zs{u}:")
        a("s_mov_b64 exec, -1")
        a("s_sub_u32 s26, s26, 1"); a("s_cbranch_scc1 L_zdone")
        a("s_waitcnt vmcnt(0)")
        for u in range(NZ): a(f"v_max_u32 v{120+u}, v{124+4*u}, v{125+4*u}")
        for u in range(NZ): a(f"v_max3_u32 v{120+u}, v{126+4*u}, v{127+4*u}, v{120+u}")
        for u in range(NZ): a(f"v_cmp_eq_u32 s[{4+2*u}:{5+2*u}], -1, v{120+u}")
        if NZ == 4: a("s_or_b64 s[12:13], s[4:5], s[6:7]"); a("s_or_b64 s[14:15], s[8:9], s[10:11]"); a("s_or_b64 s[12:13], s[12:13], s[14:15]")
        else: a("s_or_b64 s[12:13], s[4:5], s[6:7]")
        a("s_cbranch_scc1 L_zpoll")
    elif spec:
        for u in range(NZ): a(f"global_load_dwordx4 v[{124+4*u}:{127+4*u}], v101, {sp(WS_)} offset:{2048*u-4096 if zl else 1024*u} {zld}")
        a("s_mov_b64 exec, -1")
        a("s_sub_u32 s26, s26, 1"); a("s_cselect_b64 s[4:5], 0, -1")
        for u in range(NZ):
            a(f"s_waitcnt vmcnt({NZ-1-u})")
            a(f"v_mfma_f32_16x16x32_bf16 v[140:143], v[148:151], v[{124+4*u}:{127+4*u}], {'0' if u == 0 else 'v[140:143]'}")
            if u == 0: a("v_max_u32 v120, v124, v125")
            else: a(f"v_max3_u32 v120, v{124+4*u}, v{125+4*u}, v120")
            a(f"v_max3_u32 v120, v{126+4*u}, v{127+4*u}, v120")
        a("v_cmp_eq_u32 vcc, -1, v120")
        a("s_and_b64 exec, vcc, s[4:5]"); a("s_cbranch_execnz L_zpoll")
    else:
        for u in range(NZ): a(f"global_load_dwordx4 v[{124+4*u}:{127+4*u}], v101, {sp(WS_)} offset:{1024*u} {zld}")
        a("s_sub_u32 s26, s26, 1"); a("s_cbranch_scc1 L_zdone")
        for u in range(NZ):
            a(f"s_waitcnt vmcnt({NZ*zp-1-u})")
            if u == 0: a("v_max_u32 v120, v124, v125")
            else: a(f"v_max3_u32 v120, v{124+4*u}, v{125+4*u}, v120")
            a(f"v_max3_u32 v120, v{126+4*u}, v{127+4*u}, v120")
        a("v_cmp_eq_u32 vcc, -1, v120")
        a("s_and_b64 exec, exec, vcc"); a("s_cbranch_execnz L_zpoll")
    a("L_zdone:")
    a("s_mov_b64 exec, -1")
    if zp == 1 and not spec: a("s_waitcnt vmcnt(0)")
    stamp(6)
    if zm == 3:
        for u in range(0 if spec else 4): a(f"v_mfma_f32_16x16x32_bf16 v[140:143], v[148:151], v[{124+4*u}:{127+4*u}], {'0' if u == 0 else 'v[140:143]'}")
        a(f"v_add_f32_dpp v144, v140, v140 row_ror:8 row_mask:0xf bank_mask:0x3"); a(f"v_add_f32_dpp v145, v141, v141 row_ror:8 row_mask:0xf bank_mask:0x3")
        a(f"v_add_f32_dpp v144, v142, v142 row_ror:8 row_mask:0xf bank_mask:0xc"); a(f"v_add_f32_dpp v145, v143, v143 row_ror:8 row_mask:0xf bank_mask:0xc")
        a(f"v_add_f32_dpp v116, v144, v144 row_shl:4 row_mask:0xf bank_mask:0x5"); a(f"v_add_f32_dpp v116, v145, v145 row_shr:4 row_mask:0xf bank_mask:0xa")
    else:
        assert zm == 1 and cont == 0
        for k in (0, 2): a(f"v_pk_add_f32 v[{140+k}:{141+k}], v[{124+k}:{125+k}], v[{128+k}:{129+k}]")
        for k in (0, 2): a(f"v_pk_add_f32 v[{144+k}:{145+k}], v[{132+k}:{133+k}], v[{136+k}:{137+k}]")
        for k in (0, 2): a(f"v_pk_add_f32 v[{140+k}:{141+k}], v[{140+k}:{141+k}], v[{144+k}:{145+k}]")
        if cont == 2:
            a(f"v_add_f32_dpp v128, v124, v124 row_ror:8 row_mask:0xf bank_mask:0x3"); a(f"v_add_f32_dpp v129, v125, v125 row_ror:8 row_mask:0xf bank_mask:0x3")
            a(f"v_add_f32_dpp v128, v126, v126 row_ror:8 row_mask:0xf bank_mask:0xc"); a(f"v_add_f32_dpp v129, v127, v127 row_ror:8 row_mask:0xf bank_mask:0xc")
            a(f"v_add_f32_dpp v116, v128, v128 row_shl:4 row_mask:0xf bank_mask:0x5"); a(f"v_add_f32_dpp v116, v129, v129 row_shr:4 row_mask:0xf bank_mask:0xa")
            a("v_mov_b32 v117, v116"); a("v_permlane32_swap_b32 v116, v117"); a("v_add_f32 v116, v116, v117")
            a("v_mov_b32 v117, v116"); a("v_permlane16_swap_b32 v116, v117"); a("v_add_f32 v116, v116, v117")
        else:
            a("v_permlane32_swap_b32 v140, v142"); a("v_permlane32_swap_b32 v141, v143")
            a("v_pk_add_f32 v[116:117], v[140:141], v[142:143]")
            a("v_permlane16_swap_b32 v116, v117"); a("v_add_f32 v116, v116, v117")
            if zm == 2: a(f"v_add_f32_dpp v116, v116, v116 row_ror:2 {FULL}")
            if zm:
                a(f"v_add_f32_dpp v116, v116, v116 row_ror:4 {FULL}"); a(f"v_add_f32_dpp v116, v116, v116 row_ror:8 {FULL}")
            else: rowred("v116")
    rnd("v116", "v116"); a("v_add_f32 v116, v108, v116"); rnd("v116", "v116"); a("v_add_f32 v116, v116, v109")
    a("v_cvt_pk_bf16_f32 v116, v116, v116")
    em = ("0x00010001", "0x000f000f", "0x00030003", "")[zm]
    if zm == 3: a("s_mov_b32 exec_hi, 0")
    elif cont == 2: a("s_mov_b64 exec, 0xffff")
    else: a(f"s_mov_b32 exec_lo, {em}"); a(f"s_mov_b32 exec_hi, {em}")
    def dspin():
        a("s_add_u32 s60, s64, 12000")
        a("L_dpre:"); a("s_memrealtime s[62:63]"); a("s_waitcnt lgkmcnt(0)")
        a("s_sub_u32 s61, s62, s60"); a("s_cmp_lt_i32 s61, 0"); a("s_cbranch_scc1 L_dpre")
    if dpre == 1: dspin()
    if not nox & 128: a(f"global_store_short v102, v116, {sp(OUT_)} {opol}")
    if dpre == 2: dspin()
    if stamps:
        a("L_fin:")
        a("s_waitcnt vmcnt(0)"); stamp(1)
        a("s_cmp_lg_u32 s20, 0"); a("s_cbranch_scc1 L_end")
        if diag is not None:
            if diag < 7:
                if diagb == 6: a("s_cmp_lg_u32 s23, 0"); a("s_cbranch_scc1 L_end")
                diag_exit()
        else: dump_stamps([0, 1, 2, 3, 4, 5, 6])
    a("L_end:")
    a("s_endpgm")
    if order: a.L = a.L[:mark0] + a.L[mark1:] + a.L[mark0:mark1]
    a.fix()
    head = HDR + f"; @launch grid=(256,1,1) block=(512,1,1) lds={LDS_BYTES}\n" + DOC + f""".amdgcn_target "amdgcn-amd-amdhsa--gfx950"
.text
.globl {KN}
.p2align 8
.type {KN},@function
"""
    tail = f""".section .rodata,"a"
.p2align 6
.amdhsa_kernel {KN}
  .amdhsa_next_free_vgpr 256
  .amdhsa_next_free_sgpr 96
  .amdhsa_accum_offset 256
  .amdhsa_group_segment_fixed_size 0
  .amdhsa_kernarg_size 104
  .amdhsa_user_sgpr_count 2
  .amdhsa_user_sgpr_kernarg_segment_ptr 1
  .amdhsa_system_sgpr_workgroup_id_x 1
  .amdhsa_float_denorm_mode_32 3
.end_amdhsa_kernel
"""
    return head + a.text() + tail

def parse(spec):
    kw = {}
    for kv in spec.split(","):
        if not kv: continue
        k, v = kv.split("=")
        kw[k] = int(v) if v.lstrip("-").isdigit() else (int(v, 16) if v.startswith("0x") else v.replace("+", " ").replace("none", ""))
    return kw
if __name__ == "__main__":
    import build
    names = []
    for spec in sys.argv[1:]:
        nm = "k_" + spec.replace(",", "_").replace("=", "").replace("+", "")
        open(nm + ".s", "w").write(gen(**parse(spec)))
        build.build(nm + ".s")
        names.append(nm)
    print(" ".join(n + ".co" for n in names))
```
